```python
import torch

def _softmax(x, axis=-1):
    return torch.softmax(x, dim=axis)
def _gelu(x):
    return torch.nn.functional.gelu(x, approximate="tanh")
def _silu(x):
    return torch.nn.functional.silu(x)
def _sigmoid(x):
    return torch.sigmoid(x)
def _layernorm(x, axis=-1, eps=1e-5):
    m = x.mean(dim=axis, keepdim=True)
    v = x.var(dim=axis, keepdim=True, unbiased=False)
    return (x - m) / torch.sqrt(v + eps)
def _scatter_add(tgt, idx, src, axis=0):
    return tgt.clone().index_add_(axis, idx, src)
def _segment_sum(src, seg, n):
    out = torch.zeros((n,) + src.shape[1:], dtype=src.dtype)
    return out.index_add_(0, seg, src)
def _pad(x, pw):
    flat = tuple(v for pair in reversed(pw) for v in pair)
    return torch.nn.functional.pad(x, flat)

kernel_name = 'recurrent_scan__compressed_kv_cla__swiglu_ffn__prompt'

def setup_inputs():

    _w = (lambda a: (lambda t: t.to(torch.bfloat16) if t.is_floating_point() else t)(torch.as_tensor(a)))
    def _A_setup():
        B, H, Sq, Sk, D, M = 1, 16, 2048, 2048, 256, 448
        Dc = 4 * D
        return {
            "x": _w((lambda *s: torch.randn(*s, dtype=torch.bfloat16) * 0.05)(B, Sq, M)),
            "c_kv": _w((lambda *s: torch.randn(*s, dtype=torch.bfloat16) * 0.2)(B, Sk, Dc)),
            "w_q": _w((lambda *s: torch.randn(*s, dtype=torch.bfloat16) * 3.2)(M, H, D) * (M ** -0.5)),
            "w_uk": _w((lambda *s: torch.randn(*s, dtype=torch.bfloat16) * 3.2)(Dc, H, D) * (Dc ** -0.5)),
            "w_uv": _w((lambda *s: torch.randn(*s, dtype=torch.bfloat16) * 0.2)(Dc, H, D) * (Dc ** -0.5)),
            "w_o": _w((lambda *s: torch.randn(*s, dtype=torch.bfloat16) * 0.2)(H, D, M) * ((H * D) ** -0.5)),
        }
    _A_in = _A_setup()

    def _B_setup():
        B, S, D, F = 1, 2048, 448, 1792
        return {
            "x": _w((lambda *s: torch.randn(*s, dtype=torch.bfloat16) * 0.05)(B, S, D)),
            "w_gate": _w((lambda *s: torch.randn(*s, dtype=torch.bfloat16) * 0.1)(D, F)),
            "w_up": _w((lambda *s: torch.randn(*s, dtype=torch.bfloat16) * 0.1)(D, F)),
            "w_down": _w((lambda *s: torch.randn(*s, dtype=torch.bfloat16) * 0.1)(F, D)),
        }
    _B_in = _B_setup()

    return {
        "A_x": _A_in["x"],
        "A_c_kv": _A_in["c_kv"],
        "A_w_q": _A_in["w_q"],
        "A_w_uk": _A_in["w_uk"],
        "A_w_uv": _A_in["w_uv"],
        "A_w_o": _A_in["w_o"],
        "B_x": _B_in["x"],
        "B_w_gate": _B_in["w_gate"],
        "B_w_up": _B_in["w_up"],
        "B_w_down": _B_in["w_down"],
    }

def reference(A_x, A_c_kv, A_w_q, A_w_uk, A_w_uv, A_w_o, B_x, B_w_gate, B_w_up, B_w_down):
    def _A_ref(x, c_kv, w_q, w_uk, w_uv, w_o):
        B, Sq, M = x.shape[0], x.shape[1], x.shape[2]
        Sk = c_kv.shape[1]
        H, D = w_q.shape[1], w_q.shape[2]
        q = torch.einsum("bqm,mhd->bhqd", x, w_q)
        k = torch.einsum("bkc,chd->bhkd", c_kv, w_uk)
        v = torch.einsum("bkc,chd->bhkd", c_kv, w_uv)
        scores = torch.einsum("bhqd,bhkd->bhqk", q, k) * (D ** -0.5)
        off = Sk - Sq
        qi = torch.arange(Sq)[:, None]
        kj = torch.arange(Sk)[None, :]
        cmask = kj <= (qi + off)
        scores = torch.where(cmask[None, None], scores, -1e9)
        p = _softmax(scores, axis=-1)
        ctx = torch.einsum("bhqk,bhkd->bhqd", p, v)
        return torch.einsum("bhqd,hdm->bqm", ctx, w_o)

    def _B_ref(x, w_gate, w_up, w_down):
        g = _silu(x @ w_gate)
        u = x @ w_up
        return (g * u) @ w_down

    x = A_x
    xn = _layernorm(x, axis=-1)
    s = _A_ref(xn, A_c_kv, A_w_q, A_w_uk, A_w_uv, A_w_o)
    g = _silu(_B_ref(xn, B_w_gate, B_w_up, B_w_down))
    return x + s * g
```

```python
class Asm:
    def __init__(self):
        self.lines = []
        self._uid = 0
    def __call__(self, s):
        for l in s.split("\n"):
            l = l.strip()
            if l:
                self.lines.append(("    " + l) if not l.endswith(":") else l)
    def label(self, name):
        self.lines.append(name + ":")
    def uid(self, p="L"):
        self._uid += 1
        return f"{p}_{self._uid}"
    def ext(self, lst):
        for l in lst:
            self(l)
    def text(self):
        return "\n".join(self.lines) + "\n"

def vr(base, n=1, f="v"):
    return f"{f}{base}" if n == 1 else f"{f}[{base}:{base+n-1}]"
def ar(base, n=1):
    return vr(base, n, "a")
def sr(base, n=1):
    return vr(base, n, "s")

def interleave(mfmas, fillers):
    out = list(fillers.get(-1, []))
    for i, m in enumerate(mfmas):
        out.append(m)
        out.extend(fillers.get(i, []))
    return out

def kernel_desc(name, vgpr, sgpr, accum):
    return f""".amdhsa_kernel {name}
  .amdhsa_next_free_vgpr {vgpr}
  .amdhsa_next_free_sgpr {sgpr}
  .amdhsa_accum_offset {accum}
  .amdhsa_group_segment_fixed_size 0
  .amdhsa_kernarg_size 104
  .amdhsa_user_sgpr_count 2
  .amdhsa_user_sgpr_kernarg_segment_ptr 1
  .amdhsa_system_sgpr_workgroup_id_x 1
  .amdhsa_float_denorm_mode_32 3
  .amdhsa_float_denorm_mode_16_64 3
.end_amdhsa_kernel
"""
```

```python
from asmlib import *
from layout import *

def wave_sum(a, v, tmp, s0):
    a(f"s_nop 1")
    a(f"v_add_f32_dpp v{v}, v{v}, v{v} quad_perm:[1,0,3,2] row_mask:0xf bank_mask:0xf")
    a(f"s_nop 1")
    a(f"v_add_f32_dpp v{v}, v{v}, v{v} quad_perm:[2,3,0,1] row_mask:0xf bank_mask:0xf")
    a(f"s_nop 1")
    a(f"v_add_f32_dpp v{v}, v{v}, v{v} row_half_mirror row_mask:0xf bank_mask:0xf")
    a(f"s_nop 1")
    a(f"v_add_f32_dpp v{v}, v{v}, v{v} row_mirror row_mask:0xf bank_mask:0xf")
    a(f"s_nop 1")
    for i in range(4):
        a(f"v_readlane_b32 s{s0+i}, v{v}, {16*i}")
    a(f"s_nop 1")
    a(f"v_mov_b32 v{v}, s{s0}")
    a(f"v_add_f32 v{v}, s{s0+1}, v{v}")
    a(f"v_mov_b32 v{tmp}, s{s0+2}")
    a(f"v_add_f32 v{tmp}, s{s0+3}, v{tmp}")
    a(f"v_add_f32 v{v}, v{v}, v{tmp}")

def rnd_bf16(a, v):
    a(f"v_cvt_pk_bf16_f32 v{v}, v{v}, v{v}")
    a(f"v_lshlrev_b32 v{v}, 16, v{v}")

def ln_row(a, R, X, T, s0, vccmask="vcc"):
    for i in range(4):
        a(f"v_lshlrev_b32 v{X+2*i}, 16, v{R+i}")
        a(f"v_and_b32 v{X+2*i+1}, 0xffff0000, v{R+i}")
    a(f"v_add_f32 v{T}, v{X}, v{X+1}")
    for i in range(2, 8):
        a(f"v_add_f32 v{T}, v{T}, v{X+i}")
    wave_sum(a, T, T+1, s0)
    a(f"v_mul_f32 v{T}, 0x{f32hex(1.0/448)}, v{T}")
    a(f"v_sub_f32 v{T+1}, v{X}, v{T}")
    a(f"v_mul_f32 v{T+2}, v{T+1}, v{T+1}")
    for i in range(1, 8):
        a(f"v_sub_f32 v{T+1}, v{X+i}, v{T}")
        a(f"v_fmac_f32 v{T+2}, v{T+1}, v{T+1}")
    a(f"v_cndmask_b32 v{T+2}, 0, v{T+2}, vcc")
    wave_sum(a, T+2, T+1, s0)
    a(f"v_mul_f32 v{T+2}, 0x{f32hex(1.0/448)}, v{T+2}")
    rnd_bf16(a, T)
    rnd_bf16(a, T+2)
    a(f"v_add_f32 v{T+2}, 0x{f32hex(1e-5)}, v{T+2}")
    rnd_bf16(a, T+2)
    a(f"v_sqrt_f32 v{T+2}, v{T+2}")
    a("s_nop 0")
    rnd_bf16(a, T+2)
    a(f"v_rcp_f32 v{T+2}, v{T+2}")
    for i in range(8):
        a(f"v_sub_f32 v{X+i}, v{X+i}, v{T}")
    for i in range(4):
        a(f"v_cvt_pk_bf16_f32 v{R+i}, v{X+2*i}, v{X+2*i+1}")
    for i in range(4):
        a(f"v_lshlrev_b32 v{X+2*i}, 16, v{R+i}")
        a(f"v_and_b32 v{X+2*i+1}, 0xffff0000, v{R+i}")
    for i in range(8):
        a(f"v_mul_f32 v{X+i}, v{X+i}, v{T+2}")
    for i in range(4):
        a(f"v_cvt_pk_bf16_f32 v{R+i}, v{X+2*i}, v{X+2*i+1}")

import struct
def f32hex(x):
    return "%08x" % struct.unpack("<I", struct.pack("<f", x))[0]

def gen_k0(name="ln_kernel"):
    a = Asm()
    a(f".p2align 8")
    a(f".globl {name}")
    a(f".type {name},@function")
    a.label(name)
    a(f"""
    s_cmp_ge_u32 s2, 512
    s_cbranch_scc1 {name}_done
    s_load_dwordx2 s[4:5], s[0:1], 0
    s_load_dwordx2 s[6:7], s[0:1], 96
    v_and_b32 v1, 63, v0
    v_lshrrev_b32 v2, 6, v0
    s_lshl_b32 s3, s2, 2
    v_add_u32 v2, s3, v2
    v_mul_u32_u24 v2, 896, v2
    v_lshl_add_u32 v2, v1, 4, v2
    v_cmp_gt_u32 vcc, 56, v1
    v_mov_b32 v3, 0x7fffff00
    s_nop 0
    v_cndmask_b32 v2, v3, v2, vcc
    s_waitcnt lgkmcnt(0)
    s_mov_b32 s8, s4
    s_mov_b32 s9, s5
    s_mov_b32 s10, {XN_BYTES}
    s_mov_b32 s11, 0x20000
    s_mov_b32 s12, s6
    s_mov_b32 s13, s7
    s_mov_b32 s14, {XN_BYTES}
    s_mov_b32 s15, 0x20000
    buffer_load_dwordx4 v[4:7], v2, s[8:11], 0 offen
    s_waitcnt vmcnt(0)
    """)
    ln_row(a, 4, 8, 16, 16)
    a(f"buffer_store_dwordx4 v[4:7], v2, s[12:15], 0 offen")
    a.label(f"{name}_done")
    a("s_endpgm")
    return a.text(), kernel_desc(name, 24, 24, 24), f"; @launch kernel={name} grid=(512,1,1) block=(256,1,1) lds=0"
```

```python
from asmlib import *
from layout import *
from k0 import f32hex

SLOT = 32768
RING = 5 * SLOT

def acc(t):
    return vr(32 + 16 * t, 16) if t < 14 else ar(16 * (t - 14), 16)
def XF(s, j): return ar(32 + 32 * s + 4 * j, 4)
def WF(s, j, half=None):
    b = 48 + 32 * s + 4 * j
    return ar(b, 4) if half is None else ar(b + 2 * half, 2)
STASH = 96

SA, SB0, SB1, SWS = 8, 12, 16, 20
sA0, sA1, sB, sBstep = 24, 25, 26, 27
sWr, sRdA, sRdB, sCnt = 28, 29, 30, 31
sCntA, sCntB = 32, 33
sW, sW4K, sW8K = 34, 35, 36
sT2, sIsV, sPhase = 37, 38, 39
pCKV, pWQ, pWUK, pWUV, pWG, pWU, pWS = 40, 42, 44, 46, 48, 50, 52
sMb1, sHd1, sMb2, sHd2 = 54, 55, 56, 57
nA_lo, nA_hi, nA_sz, nA0, nA1, nCntA = 58, 59, 60, 61, 62, 63
nB0_lo, nB0_hi, nB1_lo, nB1_hi, nB_sz, nB, nBstep, nCntB = 64, 65, 66, 67, 68, 69, 70, 71
t0, t1, t2, t3 = 72, 73, 74, 75
sSt = 76
sTm = 80
vA, vB = 2, 6
vXl, vWl = 10, 14
vXc, vWc = 16, 20
vSt = 22
vSt2 = 23
vP0, vP1 = 24, 28

def reads(s, ks):
    r = []
    for j in range(4):
        r.append(f"ds_read_b128 {XF(s, j)}, v{vXc + ks} offset:{j * 4096}")
        hf, p = j >> 1, j & 1
        for t in range(2):
            r.append(f"ds_read_b64_tr_b16 {WF(s, j, t)}, v{vWc + p} offset:{hf * 16384 + (16 * ks + 4 * t) * 256}")
    return r

def mfmas(s, swap, first=False):
    m = []
    for ti in range(4):
        for tj in range(4):
            t = ti * 4 + tj
            c = "0" if first else acc(t)
            if swap:
                m.append(f"v_mfma_f32_32x32x16_bf16 {acc(t)}, {XF(s, tj)}, {WF(s, ti)}, {c}")
            else:
                m.append(f"v_mfma_f32_32x32x16_bf16 {acc(t)}, {WF(s, ti)}, {XF(s, tj)}, {c}")
    return m

def dmaA(grp):
    so = sA0 if grp == 0 else sA1
    return [f"buffer_load_dwordx4 v{vA + j}, {sr(SA, 4)}, s{so} offen offset:{j * 1024} lds" for j in range(4)]
def dmaB(grp):
    srd = SB0 if grp == 0 else SB1
    return [f"buffer_load_dwordx4 v{vB + j}, {sr(srd, 4)}, s{sB} offen offset:{j * 1024} lds" for j in range(4)]
def m0A(grp):
    return [f"s_add_u32 m0, s{sWr}, s{sW8K}"] if grp == 0 else [f"s_add_u32 m0, m0, 4096"]
def m0B(grp):
    return [f"s_add_u32 m0, s{sWr}, s{sW4K}"] if grp == 0 else [f"s_add_u32 m0, m0, 16384"]
def adv_wr():
    return [f"s_add_u32 s{sWr}, s{sWr}, {SLOT}", f"s_cmp_eq_u32 s{sWr}, {RING}", f"s_cselect_b32 s{sWr}, 0, s{sWr}"]
def adv2(s):
    return [f"s_add_u32 s{s}, s{s}, {2 * SLOT}", f"s_sub_u32 s{t0}, s{s}, {RING}", f"s_cmp_ge_u32 s{s}, {RING}",
            f"s_cselect_b32 s{s}, s{t0}, s{s}"]

def advA(a):
    L = a.uid("k1_swA")
    return adv_wr() + [f"s_add_u32 s{sA0}, s{sA0}, 128", f"s_add_u32 s{sA1}, s{sA1}, 128",
        f"s_sub_u32 s{sCntA}, s{sCntA}, 1", f"s_cmp_lg_u32 s{sCntA}, 0", f"s_cbranch_scc1 {L}",
        f"s_mov_b32 s{SA}, s{nA_lo}", f"s_mov_b32 s{SA+1}, s{nA_hi}", f"s_mov_b32 s{SA+2}, s{nA_sz}",
        f"s_mov_b32 s{sA0}, s{nA0}", f"s_mov_b32 s{sA1}, s{nA1}", f"s_mov_b32 s{sCntA}, s{nCntA}",
        f"s_mov_b32 s{nA_sz}, 0", f"s_movk_i32 s{nCntA}, 1000"] + \
        [f"v_accvgpr_read_b32 v{vA + j}, a{STASH + j}" for j in range(4)] + [f"{L}:"]
def advB(a):
    L = a.uid("k1_swB")
    return adv_wr() + [f"s_add_u32 s{sB}, s{sB}, s{sBstep}",
        f"s_sub_u32 s{sCntB}, s{sCntB}, 1", f"s_cmp_lg_u32 s{sCntB}, 0", f"s_cbranch_scc1 {L}",
        f"s_mov_b32 s{SB0}, s{nB0_lo}", f"s_mov_b32 s{SB0+1}, s{nB0_hi}", f"s_mov_b32 s{SB0+2}, s{nB_sz}",
        f"s_mov_b32 s{SB1}, s{nB1_lo}", f"s_mov_b32 s{SB1+1}, s{nB1_hi}", f"s_mov_b32 s{SB1+2}, s{nB_sz}",
        f"s_mov_b32 s{sB}, s{nB}", f"s_mov_b32 s{sBstep}, s{nBstep}", f"s_mov_b32 s{sCntB}, s{nCntB}",
        f"s_mov_b32 s{nB_sz}, 0", f"s_movk_i32 s{nCntB}, 1000"] + \
        [f"v_accvgpr_read_b32 v{vB + j}, a{STASH + 4 + j}" for j in range(4)] + [f"{L}:"]

def upd_rd():
    r = adv2(sRdA) + adv2(sRdB)
    r += [f"v_add_u32 v{vXc + k}, s{sRdA}, v{vXl + k}" for k in range(4)]
    r += [f"v_add_u32 v{vWc + k}, s{sRdB}, v{vWl + k}" for k in range(2)]
    return r

def kstep(a, ks, swap, first=False, opt=None):
    s = ks & 1
    rd = reads(s ^ 1, (ks + 1) & 3)
    f = {}
    def put(g, l): f.setdefault(g, []).extend(l)
    if ks == 3:
        put(-1, ["s_waitcnt vmcnt(8) lgkmcnt(0)", "s_barrier"])
        put(0, upd_rd())
        r0 = 1
    else:
        put(-1, ["s_waitcnt lgkmcnt(0)"])
        r0 = 0
    if ks == 1:
        put(0, advB(a))
    for i, r in enumerate(rd):
        put(r0 + i, [r])
    if ks == 3: m0, d = m0B(0), dmaB(0)
    elif ks == 0: m0, d = m0B(1), dmaB(1)
    elif ks == 1: m0, d = m0A(0), dmaA(0)
    else: m0, d = m0A(1), dmaA(1)
    if opt and opt.get("nodma"): d = []
    gaps = opt.get("dmagaps", [2, 6, 10, 14]) if opt else [2, 6, 10, 14]
    put(1, m0)
    for g, x in zip(gaps, d):
        put(g, [x])
    if ks == 2:
        put(15, advA(a))
    a.ext(interleave(mfmas(s, swap, first), f))

def stamp(a, opt, i):
    if opt.get("stamp"):
        a(f"s_memtime s[{sTm+8+2*i}:{sTm+9+2*i}]")

def gen_k1(name="proj_kernel", opt=None):
    opt = opt or {}
    a = Asm()
    a(f".p2align 8\n.globl {name}\n.type {name},@function")
    a.label(name)
    a(f"s_cmp_ge_u32 s2, 256\ns_cbranch_scc1 {name}_done")
    if opt.get("stamp"):
        a(f"s_memtime s[{sTm}:{sTm+1}]\ns_memrealtime s[{sTm+2}:{sTm+3}]")
    a(f"""
    s_load_dwordx2 s[{pCKV}:{pCKV+1}], s[0:1], 8
    s_load_dwordx2 s[{pWQ}:{pWQ+1}], s[0:1], 16
    s_load_dwordx4 s[{pWUK}:{pWUK+3}], s[0:1], 24
    s_load_dwordx4 s[{pWG}:{pWG+3}], s[0:1], 56
    s_load_dwordx2 s[{pWS}:{pWS+1}], s[0:1], 96
    v_lshrrev_b32 v1, 6, v0
    s_nop 0
    v_readfirstlane_b32 s{sW}, v1
    v_and_b32 v1, 63, v0
    s_and_b32 s{t0}, s2, 7            ; xcd
    s_lshr_b32 s{t1}, s2, 3           ; idx
    s_and_b32 s{sMb1}, s{t1}, 7
    s_lshr_b32 s{t2}, s{t1}, 3        ; sel
    s_and_b32 s{t3}, s{t2}, 1
    s_lshl_b32 s{t3}, s{t3}, 3
    s_add_u32 s{sHd1}, s{t0}, s{t3}
    s_lshr_b32 s{sIsV}, s{t2}, 1
    s_lshl_b32 s{sW4K}, s{sW}, 12
    s_lshl_b32 s{sW8K}, s{sW}, 13
    ; tile 2
    s_mov_b32 s{sMb2}, s{sMb1}
    s_mov_b32 s{sHd2}, s{sHd1}
    s_mov_b32 s{sT2}, 1
    s_cmp_lt_u32 s{t1}, 16
    s_cbranch_scc1 {name}_t2done
    s_mul_i32 s{t2}, s{t0}, 14
    s_add_u32 s{t2}, s{t2}, s{t1}
    s_sub_u32 s{t2}, s{t2}, 16
    s_and_b32 s{sMb2}, s{t2}, 7
    s_lshr_b32 s{sHd2}, s{t2}, 3      ; fb
    s_mov_b32 s{sT2}, 2
    s_cmp_lt_u32 s{t1}, 30
    s_cbranch_scc1 {name}_t2done
    s_mov_b32 s{sT2}, 0
    """)
    a.label(f"{name}_t2done")
    a(f"""
    v_lshrrev_b32 v24, 3, v1          ; l>>3
    s_lshl_b32 s{t0}, s{sW}, 6
    v_add_u32 v24, s{t0}, v24         ; 64w + (l>>3)
    v_lshrrev_b32 v25, 4, v1          ; l>>4
    v_and_b32 v26, 7, v1
    v_xor_b32 v27, v26, v25
    v_xor_b32 v28, 4, v27
    v_lshlrev_b32 v27, 4, v27
    v_lshlrev_b32 v28, 4, v28
    """)
    for j in range(4):
        ch = 27 if j % 2 == 0 else 28
        a(f"v_add_u32 v29, {8*j}, v24")
        a(f"v_lshlrev_b32 v30, 11, v29")
        a(f"v_add_u32 v30, v30, v{ch}")
        a(f"v_subrev_u32 v{vA+j}, {1024*j}, v30") if j else a(f"v_mov_b32 v{vA}, v30")
        a(f"v_mul_u32_u24 v30, 896, v29")
        a(f"v_add_u32 v30, v30, v{ch}")
        if j: a(f"v_subrev_u32 v30, {1024*j}, v30")
        a(f"v_accvgpr_write_b32 a{STASH+j}, v30")
    a(f"""
    s_lshl_b32 s{t0}, s{sW}, 4
    v_add_u32 v24, s{t0}, v25         ; 16w + (l>>4)
    v_bfe_u32 v26, v1, 2, 2           ; c>>2
    v_xor_b32 v26, v26, v25
    v_lshlrev_b32 v26, 6, v26
    v_and_b32 v27, 3, v1
    v_lshl_add_u32 v26, v27, 4, v26   ; srccol*16
    s_movk_i32 s{t3}, 3584
    s_movk_i32 s{t2}, 8192
    s_cmp_eq_u32 s{sT2}, 2
    s_cselect_b32 s{t2}, s{t3}, s{t2}
    """)
    for j in range(4):
        a(f"v_add_u32 v29, {4*j}, v24")
        a(f"v_lshlrev_b32 v30, 13, v29")
        a(f"v_add_u32 v30, v30, v26")
        a(f"v_subrev_u32 v{vB+j}, {1024*j}, v30") if j else a(f"v_mov_b32 v{vB}, v30")
        a(f"v_mul_lo_u32 v30, v29, s{t2}")
        a(f"v_add_u32 v30, v30, v26")
        if j: a(f"v_subrev_u32 v30, {1024*j}, v30")
        a(f"v_accvgpr_write_b32 a{STASH+4+j}, v30")
    a(f"s_lshl_b32 s{nBstep}, s{t2}, 6")
    a(f"""
    v_and_b32 v24, 31, v1
    s_and_b32 s{t0}, s{sW}, 1
    s_lshl_b32 s{t0}, s{t0}, 14
    v_lshlrev_b32 v26, 7, v24
    v_add_u32 v26, s{t0}, v26
    v_bfe_u32 v27, v1, 1, 3
    v_lshrrev_b32 v28, 5, v1
    v_xor_b32 v27, v27, v28
    """)
    for ks in range(4):
        a(f"v_xor_b32 v29, {2*ks}, v27")
        a(f"v_lshl_add_u32 v{vXl+ks}, v29, 4, v26")
    a(f"""
    v_bfe_u32 v24, v1, 2, 2           ; r
    v_lshl_add_u32 v26, v28, 3, v24   ; 8h + r
    v_lshlrev_b32 v26, 8, v26
    v_bfe_u32 v27, v1, 4, 1
    v_lshl_add_u32 v26, v27, 5, v26
    v_and_b32 v27, 3, v1
    v_lshl_add_u32 v26, v27, 3, v26
    s_and_b32 s{t0}, s{sW}, 2         ; 2wr
    v_xor_b32 v27, s{t0}, v24
    v_lshl_add_u32 v{vWl}, v27, 6, v26
    v_xor_b32 v27, 1, v27
    v_lshl_add_u32 v{vWl+1}, v27, 6, v26
    v_and_b32 v27, 15, v1
    v_lshlrev_b32 v27, 4, v27
    v_lshl_add_u32 v{vSt}, v28, 8, v27
    s_waitcnt lgkmcnt(0)
    s_mov_b32 s{SA}, s{pCKV}
    s_mov_b32 s{SA+1}, s{pCKV+1}
    s_mov_b32 s{SA+2}, {2048*1024*2}
    s_mov_b32 s{SA+3}, 0x20000
    s_cmp_eq_u32 s{sIsV}, 0
    s_cselect_b32 s{SB0}, s{pWUK}, s{pWUV}
    s_cselect_b32 s{SB0+1}, s{pWUK+1}, s{pWUV+1}
    s_mov_b32 s{SB0+2}, {1024*4096*2}
    s_mov_b32 s{SB0+3}, 0x20000
    s_add_u32 s{SB1}, s{SB0}, 256
    s_addc_u32 s{SB1+1}, s{SB0+1}, 0
    s_mov_b32 s{SB1+2}, {1024*4096*2-256}
    s_mov_b32 s{SB1+3}, 0x20000
    s_mov_b32 s{SWS}, s{pWS}
    s_mov_b32 s{SWS+1}, s{pWS+1}
    s_mov_b32 s{SWS+2}, {WS_BYTES}
    s_mov_b32 s{SWS+3}, 0x20000
    s_lshl_b32 s{sA0}, s{sMb1}, 19
    s_add_u32 s{sA1}, s{sA0}, {32*2048}
    s_lshl_b32 s{sB}, s{sHd1}, 9
    s_mov_b32 s{sBstep}, {64*8192}
    s_mov_b32 s{sCntA}, 16
    s_mov_b32 s{sCntB}, 16
    s_mov_b32 s{sWr}, 0
    """)
    for g in range(2):
        a.ext(m0A(g)); a("s_nop 0"); a.ext(dmaA(g))
    a.ext(advA(a))
    for g in range(2):
        a.ext(m0B(g)); a("s_nop 0"); a.ext(dmaB(g))
    a(f"""
    s_mov_b32 s{nA_lo}, s{pWS}
    s_mov_b32 s{nA_hi}, s{pWS+1}
    s_mov_b32 s{nA_sz}, {XN_BYTES}
    s_mul_i32 s{nA0}, s{sMb2}, {256*896}
    s_add_u32 s{nA1}, s{nA0}, {32*896}
    s_mov_b32 s{nCntA}, 7
    s_mov_b32 s{nCntB}, 7
    s_add_u32 s{t0}, s{pWQ}, 256
    s_addc_u32 s{t1}, s{pWQ+1}, 0
    s_cmp_eq_u32 s{sT2}, 2
    s_cselect_b32 s{nB0_lo}, s{pWG}, s{pWQ}
    s_cselect_b32 s{nB0_hi}, s{pWG+1}, s{pWQ+1}
    s_cselect_b32 s{nB1_lo}, s{pWU}, s{t0}
    s_cselect_b32 s{nB1_hi}, s{pWU+1}, s{t1}
    s_mov_b32 s{t2}, {448*1792*2}
    s_mov_b32 s{t3}, {448*4096*2-256}
    s_cselect_b32 s{nB_sz}, s{t2}, s{t3}
    s_cselect_b32 s{t2}, 8, 9
    s_lshl_b32 s{nB}, s{sHd2}, s{t2}
    s_cmp_eq_u32 s{sT2}, 0
    s_cselect_b32 s{nA_sz}, 0, s{nA_sz}
    s_cselect_b32 s{nB_sz}, 0, s{nB_sz}
    """)
    a.ext(advB(a))
    for g in range(2):
        a.ext(m0A(g)); a("s_nop 0"); a.ext(dmaA(g))
    a.ext(advA(a))
    a.ext(m0B(0)); a("s_nop 0"); a.ext(dmaB(0))
    a(f"""
    s_mov_b32 s{sRdA}, 0
    s_mov_b32 s{sRdB}, {SLOT}
    s_mov_b32 s{sCnt}, 16
    s_mov_b32 s{sPhase}, 0
    """)
    for k in range(4): a(f"v_mov_b32 v{vXc+k}, v{vXl+k}")
    for k in range(2): a(f"v_add_u32 v{vWc+k}, {SLOT}, v{vWl+k}")
    a("s_waitcnt vmcnt(12)\ns_barrier")
    stamp(a, opt, 0)
    a.ext(reads(0, 0))
    a(f"s_cmp_eq_u32 s{sIsV}, 0\ns_cbranch_scc1 {name}_firstN")
    def loop(tag, swap):
        a.label(f"{name}_first{tag}")
        kstep(a, 0, swap, True, opt)
        a(f"s_branch {name}_mid{tag}")
        a(".p2align 6")
        a.label(f"{name}_loop{tag}")
        kstep(a, 0, swap, False, opt)
        a.label(f"{name}_mid{tag}")
        kstep(a, 1, swap, False, opt)
        kstep(a, 2, swap, False, opt)
        kstep(a, 3, swap, False, opt)
        a(f"s_sub_u32 s{sCnt}, s{sCnt}, 1\ns_cmp_lg_u32 s{sCnt}, 0\ns_cbranch_scc1 {name}_loop{tag}")
    def tile_regs(t):
        if t < 14: return 32 + 16 * t
        b = 32 + 16 * (t - 14)
        for r in range(16): a(f"v_accvgpr_read_b32 v{b+r}, a{16*(t-14)+r}")
        return b
    pk = [vP0, vP1]
    def cvt_store(b, half, n, soff, imm):
        p = pk[n & 1]
        for r in range(4):
            q = b + 4 * half + 8 * (r >> 1) + 2 * (r & 1)
            a(f"v_cvt_pk_bf16_f32 v{p+r}, v{q}, v{q+1}")
        a(f"buffer_store_dwordx4 {vr(p,4)}, v{vSt2}, {sr(SWS,4)}, s{soff} offen offset:{imm + 512 * half}")
    def set_st(stride):
        a(f"v_bfe_u32 v{vSt2}, v1, 4, 1")
        a(f"v_mul_u32_u24 v{vSt2}, {stride}, v{vSt2}")
        a(f"v_add_u32 v{vSt2}, v{vSt2}, v{vSt}")
    loop("V", True)
    stamp(a, opt, 1)
    a(f"""
    s_nop 7
    s_lshl_b32 s{t0}, s{sHd1}, 21
    s_lshl_b32 s{t1}, s{sMb1}, 18
    s_add_u32 s{t0}, s{t0}, s{t1}
    s_and_b32 s{t1}, s{sW}, 1
    s_lshl_b32 s{t1}, s{t1}, 17
    s_add_u32 s{t0}, s{t0}, s{t1}
    s_and_b32 s{t1}, s{sW}, 2
    s_lshl_b32 s{t1}, s{t1}, 11
    s_add_u32 s{t0}, s{t0}, s{t1}
    s_add_u32 s{t0}, s{t0}, {KV_OFF + 16384}
    """)
    set_st(1024)
    n = 0
    for ti in range(4):
        for tj in range(4):
            b = tile_regs(ti * 4 + tj)
            a(f"s_add_u32 s{sSt}, s{t0}, {tj*32768 + (ti>>1)*8192}")
            for kk in range(2):
                cvt_store(b, kk, n, sSt, (ti & 1) * 2048); n += 1
    a(f"s_branch {name}_next")
    loop("N", False)
    a(f"s_nop 7\ns_cmp_eq_u32 s{sPhase}, 0\ns_cbranch_scc1 {name}_epiK")
    stamp(a, opt, 3)
    a(f"s_cmp_eq_u32 s{sT2}, 1\ns_cbranch_scc1 {name}_epiQ")
    a(f"""
    s_lshl_b32 s{t0}, s{sMb2}, 3
    s_and_b32 s{t1}, s{sW}, 1
    s_lshl_b32 s{t1}, s{t1}, 2
    s_add_u32 s{t0}, s{t0}, s{t1}
    s_mul_i32 s{t0}, s{t0}, 112
    s_lshl_b32 s{t1}, s{sHd2}, 2
    s_add_u32 s{t0}, s{t0}, s{t1}
    s_and_b32 s{t1}, s{sW}, 2
    s_add_u32 s{t0}, s{t0}, s{t1}
    s_lshl_b32 s{t0}, s{t0}, 10
    s_add_u32 s{t0}, s{t0}, {H_OFF}
    s_mov_b32 s{t2}, 0x{f32hex(-LOG2E)}
    """)
    set_st(57344)
    n = 0
    for ti in range(2):
        for tj in range(4):
            g = 32 + 16 * (ti * 4 + tj)
            u = tile_regs((ti + 2) * 4 + tj)
            for r in range(16): a(f"v_mul_f32 v{u+r}, v{u+r}, v{g+r}")
            for r in range(16): a(f"v_mul_f32 v{g+r}, s{t2}, v{g+r}")
            for r in range(16): a(f"v_exp_f32 v{g+r}, v{g+r}")
            for r in range(16): a(f"v_add_f32 v{g+r}, 1.0, v{g+r}")
            for r in range(16): a(f"v_rcp_f32 v{g+r}, v{g+r}")
            for r in range(16): a(f"v_mul_f32 v{u+r}, v{u+r}, v{g+r}")
            a(f"s_add_u32 s{sSt}, s{t0}, {tj*112*1024}")
            for half in range(2):
                cvt_store(u, half, n, sSt, ti * 1024); n += 1
    a(f"s_branch {name}_fin")
    def epiKQ(isQ):
        kts = 14 if isQ else 15
        hd, mb = (sHd2, sMb2) if isQ else (sHd1, sMb1)
        a(f"""
        s_lshl_b32 s{t0}, s{hd}, {kts+6}
        s_lshl_b32 s{t1}, s{mb}, {kts+3}
        s_add_u32 s{t0}, s{t0}, s{t1}
        s_and_b32 s{t1}, s{sW}, 1
        s_lshl_b32 s{t1}, s{t1}, {kts+2}
        s_add_u32 s{t0}, s{t0}, s{t1}
        s_and_b32 s{t1}, s{sW}, 2
        s_lshl_b32 s{t1}, s{t1}, 10
        s_add_u32 s{t0}, s{t0}, s{t1}
        s_add_u32 s{t0}, s{t0}, {Q_OFF if isQ else KV_OFF}
        """)
        set_st(8192)
        if isQ: a(f"s_mov_b32 s{t2}, 0x{f32hex(QSCALE)}")
        n = 0
        for ti in range(4):
            for tj in range(4):
                b = tile_regs(ti * 4 + tj)
                if isQ:
                    for r in range(16): a(f"v_mul_f32 v{b+r}, s{t2}, v{b+r}")
                a(f"s_add_u32 s{sSt}, s{t0}, {(tj << kts) + (ti>>1)*4096}")
                for half in range(2):
                    cvt_store(b, half, n, sSt, (ti & 1) * 1024); n += 1
    a.label(f"{name}_epiQ")
    epiKQ(True)
    a(f"s_branch {name}_fin")
    a.label(f"{name}_epiK")
    stamp(a, opt, 1)
    epiKQ(False)
    a.label(f"{name}_next")
    stamp(a, opt, 2)
    stamp(a, opt, 3)
    a(f"""
    s_mov_b32 s{sPhase}, 1
    s_mov_b32 s{sCnt}, 7
    s_cmp_lg_u32 s{sT2}, 0
    s_cbranch_scc1 {name}_firstN
    """)
    a.label(f"{name}_fin")
    if opt.get("stamp"):
        a(f"""
        s_waitcnt vmcnt(0)
        s_memtime s[{sTm+4}:{sTm+5}]
        s_memrealtime s[{sTm+6}:{sTm+7}]
        s_waitcnt lgkmcnt(0)
        s_sub_u32 s{t0}, s{sTm+4}, s{sTm}
        s_sub_u32 s{t1}, s{sTm+6}, s{sTm+2}
        v_mov_b32 v24, s{t0}
        v_mov_b32 v25, s{t1}
        v_mov_b32 v26, s{sTm+2}
        v_mov_b32 v27, s{sTm+6}
        s_lshl_b32 s{t2}, s2, 6
        s_lshl_b32 s{t3}, s{sW}, 4
        s_add_u32 s{t2}, s{t2}, s{t3}
        s_add_u32 s{t2}, s{t2}, {STAMP_OFF}
        v_mov_b32 v28, 0
        s_mov_b64 exec, 1
        buffer_store_dwordx4 v[24:27], v28, {sr(SWS,4)}, s{t2} offen
        s_sub_u32 s{t0}, s{sTm+8}, s{sTm}
        s_sub_u32 s{t1}, s{sTm+10}, s{sTm}
        s_sub_u32 s{t3}, s{sTm+12}, s{sTm}
        s_sub_u32 s{sSt}, s{sTm+14}, s{sTm}
        v_mov_b32 v4, s{t0}
        v_mov_b32 v5, s{t1}
        v_mov_b32 v6, s{t3}
        v_mov_b32 v7, s{sSt}
        s_add_u32 s{t2}, s{t2}, 65536
        buffer_store_dwordx4 v[4:7], v28, {sr(SWS,4)}, s{t2} offen
        """)
    a.label(f"{name}_done")
    a("s_endpgm")
    return a.text(), kernel_desc(name, 256 + 104, 100, 256), f"; @launch kernel={name} grid=(256,1,1) block=(256,1,1) lds=163840"
```

```python
from asmlib import *
from layout import *
from k0 import f32hex

SLOT = 32768
RING = 5 * SLOT
THR = 2.0 ** 16
NEG = -1.0e30
vDma, vDma2, vL16, vRd = 2, 3, 4, 5
vWo = 6
vTl, vTc = 10, 14
vT0, vT1 = 18, 19
vL = 20
vLs = 24
vT2, vT3 = 26, 27
vPm = 28
vE = 32
def NEGM(qs): return 40 + 4 * qs
def CM(kt): return 48 + 4 * kt
def MB(k, kt): return 56 + 8 * k + 4 * kt
def P(p, qs): return 72 + 8 * p + 4 * qs
def S(p, kt, qs): return 88 + 16 * p + 8 * kt + 4 * qs
vOut = 120
def OB(dk, qs): return 128 + (dk * 2 + qs) * 8
def O(dt, qs): return OB(dt >> 1, qs) + 4 * (dt & 1)
def Q(qs, dk): return ar((qs * 8 + dk) * 4, 4)
def F(f, half=None):
    b = 64 + 4 * (f % 16)
    return ar(b, 4) if half is None else ar(b + 2 * half, 2)
def PP(dk, qs): return 128 + (dk * 2 + qs) * 4
SWS, SWO, SDBG, SPT = 8, 12, 16, 4
pWS, pWO, pDBG = 20, 22, 24
sW, sW4K, sWrW, sWrap = 26, 27, 28, 29
sSrc, sSrcEnd, sSrcNext, sRd = 30, 31, 32, 33
sCnt, sSeg, sComb, sRet = 34, 35, 36, 37
sHd, sI, sBlk, sN = 38, 39, 40, 41
sThr, sPub, sPart, sSeen = 42, 43, 44, 45
sWoS, sSt0, sSt1, sBit = 46, 47, 48, 49
t0, t1, t2, t3 = 50, 51, 52, 53
sMask = 54
sTm = 60

class Sched:
    def __init__(s, a):
        s.a = a; s.reset([])
    def reset(s, frags):
        s.iss = list(frags); s.done = -1
    def wait_for(s, frag):
        idx = max(i for i, f in enumerate(s.iss) if f == frag)
        if idx <= s.done: return None
        n = min(len(s.iss) - 1 - idx, 15)
        s.done = len(s.iss) - 1 - n
        return f"s_waitcnt lgkmcnt({n})"
    def read(s, text, frag):
        s.a(text); s.iss.append(frag)
    def phase(s, mf, reads={}, valu=[], scal=[], fixed={}, fixedv={}):
        a = s.a; valu = list(valu); scal = list(scal)
        w = s.wait_for(mf[0][1])
        if w: a(w)
        for g, (m, fr) in enumerate(mf):
            a(m)
            budget, shadow = 2, 1
            def sc(t):
                nonlocal budget, shadow
                a(t)
                if shadow: shadow = 0
                else: budget -= 1
            if g + 1 < len(mf):
                w = s.wait_for(mf[g + 1][1])
                if w: sc(w)
            for t in fixed.get(g, []): sc(t)
            if shadow and scal and scal[0][0] <= g: sc(scal.pop(0)[1])
            shadow = 0
            for t in fixedv.get(g, []): a(t); budget -= 1
            for t, f in reads.get(g, []): s.read(t, f); budget -= 1
            while valu and valu[0][0] <= g and valu[0][2] <= budget:
                budget -= valu[0][2]; a(valu.pop(0)[1])
        prev_trans = False
        for v in valu:
            if prev_trans and v[2] == 1: a("s_nop 0")
            a(v[1]); prev_trans = v[2] == 2
        for t in scal: a(t[1])

def rdK(f): return (f"ds_read_b128 {F(f)}, v{vRd} offset:{16384 + f * 1024}", f)
def rdV(f): return (f"ds_read_b128 {F(f)}, v{vRd} offset:{(f - 16) * 1024}", f)
def rdKV(f): return rdK(f) if f < 16 else rdV(f)
def rdW(f):
    mt, dk = (f >> 3) & 3, f & 7
    return [(f"ds_read_b64_tr_b16 {F(f, t)}, v{vTc + mt} offset:{(32 * dk + 16 * t) * 128}", 100 + f) for t in range(2)]
def mm(d, A, B, c): return f"v_mfma_f32_16x16x32_bf16 {vr(d,4)}, {A}, {B}, {c}"
def qk(pn, qss, cinit):
    m = []
    for kt in range(2):
        for qs in qss:
            for dk in range(8):
                d = S(pn, kt, qs)
                m.append((mm(d, F(kt * 8 + dk), Q(qs, dk), cinit(kt, qs) if dk == 0 else vr(d, 4)), kt * 8 + dk))
    return m
def pv(p, qss):
    return [(mm(O(dt, qs), F(16 + dt), vr(P(p, qs), 4), vr(O(dt, qs), 4)), 16 + dt) for dt in range(16) for qs in qss]
def expw(p, qs, g0=0):
    src = [S(p, kt, qs) + r for kt in range(2) for r in range(4)]
    ls = vLs + qs
    v = []
    for k in range(8):
        v.append((g0, f"v_exp_f32 v{vE + k}, v{src[k]}", 2))
        if k == 1: v.append((g0, f"v_add_f32 v{ls}, v{vE}, v{vE + 1}", 1))
        elif k > 1: v.append((g0, f"v_add_f32 v{ls}, v{ls}, v{vE + k}", 1))
    for r in range(4):
        v.append((g0, f"v_cvt_pk_bf16_f32 v{P(p, qs) + r}, v{vE + 2 * r}, v{vE + 2 * r + 1}", 1))
    return v
def check_ops(): return [(0, f"v_max_f32 v{vT0}, v{vLs}, v{vLs + 1}", 1), (0, f"v_cmp_lt_f32 vcc, s{sThr}, v{vT0}", 1)]
def lacc(qss): return [(0, f"v_add_f32 v{vL + qs}, v{vL + qs}, v{vLs + qs}", 1) for qs in qss]
def cm_ops(qs, k): return [(0, f"v_add_f32 v{CM(kt) + r}, v{NEGM(qs)}, v{MB(k, kt) + r}", 1) for kt in range(2) for r in range(4)]
def dma(h, wo):
    if wo:
        return [f"buffer_load_dwordx4 v{vWo + j}, {sr(SWO, 4)}, s{sWoS if h == 0 else t3} offen offset:{j * 1024} lds" for j in range(4)]
    return [f"buffer_load_dwordx4 v{vDma if h == 0 else vDma2}, {sr(SWS, 4)}, s{sSrc} offen offset:{j * 1024} lds" for j in range(4)]
def m0set(h, wo):
    r = [f"s_mov_b32 m0, s{sWrW}"] if h == 0 else [f"s_add_u32 m0, s{sWrW}, 16384"]
    if wo and h == 1: r.append(f"s_add_u32 s{t3}, s{sWoS}, {128 * 896}")
    return r
def adv_wr(wo):
    r = [f"s_add_u32 s{sWrW}, s{sWrW}, {SLOT}", f"s_cmp_eq_u32 s{sWrW}, s{sWrap}", f"s_cselect_b32 s{sWrW}, s{sW4K}, s{sWrW}"]
    if wo: r += [f"s_add_u32 s{sWoS}, s{sWoS}, 128", f"s_cmp_eq_u32 s{sWoS}, 896", f"s_cselect_b32 s{SWO + 2}, 0, s{SWO + 2}"]
    else: r += [f"s_add_u32 s{sSrc}, s{sSrc}, {SLOT}", f"s_cmp_eq_u32 s{sSrc}, s{sSrcEnd}", f"s_cselect_b32 s{sSrc}, s{sSrcNext}, s{sSrc}"]
    return r
def adv_rd(): return [f"s_add_u32 s{sRd}, s{sRd}, {SLOT}", f"s_cmp_eq_u32 s{sRd}, {RING}", f"s_cselect_b32 s{sRd}, 0, s{sRd}"]
UPD = f"v_add_u32 v{vRd}, s{sRd}, v{vL16}"
UPDW = [f"v_add_u32 v{vTc + k}, s{sRd}, v{vTl + k}" for k in range(4)]
A_ENTRY = list(range(10))
B_ENTRY = list(range(16, 26))

def gen_k2(name="attn_kernel", opt=None):
    opt = opt or {}
    Y0 = opt.get("Y0", 30)
    a = Asm(); sch = Sched(a)
    N = name
    def stamp(i):
        if opt.get("stamp"): a(f"s_memtime s[{sTm + 8 + 2 * i}:{sTm + 9 + 2 * i}]")
    sites = {0: [], 1: []}
    def negm_c(kt, qs): return vr(NEGM(qs), 4)
    def masked_c(mq): return lambda kt, qs: vr(CM(kt), 4) if qs == mq else vr(NEGM(qs), 4)
    def branch_check(p, tag):
        k = len(sites[p]); sites[p].append(tag)
        a(f"s_cbranch_vccnz {N}_rare{p}")
        a.label(f"{N}_ret_{tag}")
        return k
    def phaseA(p, tag, cinit=negm_c, half=False, expq=1, wo=False, extra=[]):
        sch.reset(A_ENTRY)
        mf = qk(p ^ 1, [1] if half else [0, 1], cinit)
        st = 1 if half else 2
        reads = {st * k: [rdKV(10 + k)] for k in range(16)}
        valu = (expw(p, expq) if expq is not None else []) + check_ops() + extra
        dg = [1, 4, 7, 10] if half else [21, 23, 25, 27]
        k = len(sites[p])
        sch.phase(mf, reads, valu, scal=[(0, f"s_mov_b32 s{sRet}, {k}")] + [(dg[3], t) for t in adv_wr(wo)],
                  fixed={dg[0] - 1: m0set(1, wo)}, fixedv={g: [d] for g, d in zip(dg, dma(1, wo))})
        branch_check(p, tag)
    def phaseB(p, half=False, accq=(0, 1), expq=0, wo=False, extra=[], nxt="K", vm=16, post=[]):
        sch.reset(B_ENTRY)
        mf = pv(p, [1] if half else [0, 1])
        st = 1 if half else 2
        reads = {st * k: [rdV(26 + k)] for k in range(6)}
        gb = 5 * st + 1 if not half else 6
        for k in range(10):
            g = st * (6 + k)
            if nxt == "K": reads[g] = [rdK(k)]
            elif nxt == "V": reads[g] = [(rdV(16 + k)[0], 216 + k)]
            elif nxt == "W": reads[g] = rdW(k)
        valu = lacc(accq) + (expw(p ^ 1, expq, 3 if expq == 1 else 0) if expq is not None else []) + extra
        dg = [8, 10, 12, 14] if half else [13, 17, 21, 25]
        fv = {g: [d] for g, d in zip(dg, dma(0, wo))}
        fv[gb] = UPDW if nxt == "W" else [UPD]
        fx = {gb: [f"s_waitcnt vmcnt({vm})", "s_barrier"], dg[0] - 1: m0set(0, wo)}
        for k, t in enumerate(adv_rd()): fx[2 * k] = [t]
        sch.phase(mf, reads, valu, scal=[(26, t) for t in post], fixed=fx, fixedv=fv)

    a(f".p2align 8\n.globl {N}\n.type {N},@function")
    a.label(N)
    a(f"s_cmp_ge_u32 s2, 256\ns_cbranch_scc1 {N}_done")
    if opt.get("stamp"): a(f"s_memtime s[{sTm}:{sTm+1}]\ns_memrealtime s[{sTm+2}:{sTm+3}]")
    a(f"""
    s_load_dwordx2 s[{pWS}:{pWS+1}], s[0:1], 96
    s_load_dwordx2 s[{pWO}:{pWO+1}], s[0:1], 40
    s_load_dwordx2 s[{pDBG}:{pDBG+1}], s[0:1], 88
    v_lshrrev_b32 v1, 6, v0
    s_and_b32 s{sHd}, s2, 15
    v_readfirstlane_b32 s{sW}, v1
    v_and_b32 v1, 63, v0
    s_bfe_u32 s{sI}, s2, 0x30004
    s_lshl_b32 s{t0}, s{sI}, 2
    s_sub_u32 s{t1}, {Y0}, s{t0}
    s_cmp_eq_u32 s{sI}, 7
    s_cselect_b32 s{t1}, 0, s{t1}          ; y
    s_cselect_b32 s{t2}, 0, 1              ; split?
    s_sub_u32 s{sBlk}, 15, s{sI}
    s_lshl_b32 s{sSrcNext}, s{sHd}, 21
    s_add_u32 s{sSrcNext}, s{sSrcNext}, {KV_OFF - 16384}   ; slot(-1)
    s_lshl_b32 s{t3}, s{t1}, 15
    s_add_u32 s{t3}, s{t3}, s{sSrcNext}    ; slot(y-1)
    s_mov_b32 s{sSrcEnd}, -1
    s_cmp_ge_u32 s2, 128
    s_cbranch_scc1 {N}_typeA
    s_mov_b32 s{sComb}, 0
    s_mov_b32 s{sSeg}, s{t2}
    s_mov_b32 s{sSrc}, s{sSrcNext}
    s_mov_b32 s{sN}, s{t1}
    s_add_u32 s{sSrcEnd}, s{t3}, {SLOT}
    s_cmp_eq_u32 s{sI}, 7
    s_cselect_b32 s{sBlk}, 7, s{sBlk}
    s_cselect_b32 s{sN}, 32, s{sN}
    s_cselect_b32 s{sSrcEnd}, -1, s{sSrcEnd}
    s_branch {N}_typed
    """)
    a.label(f"{N}_typeA")
    a(f"""
    s_mov_b32 s{sComb}, s{t2}
    s_mov_b32 s{sSeg}, 0
    s_mov_b32 s{sSrc}, s{t3}
    s_sub_u32 s{sN}, 64, s{t0}
    s_sub_u32 s{sN}, s{sN}, s{t1}
    """)
    a.label(f"{N}_typed")
    a(f"""
    s_lshl_b32 s{sW4K}, s{sW}, 12
    v_lshlrev_b32 v{vL16}, 4, v1
    s_mov_b32 s{sWrW}, s{sW4K}
    s_add_u32 s{sWrap}, s{sW4K}, {RING}
    v_add_u32 v{vDma}, s{sW4K}, v{vL16}
    v_add_u32 v{vDma2}, 16384, v{vDma}
    s_waitcnt lgkmcnt(0)
    s_mov_b32 s{SWS}, s{pWS}
    s_mov_b32 s{SWS+1}, s{pWS+1}
    s_mov_b32 s{SWS+2}, {WS_BYTES}
    s_mov_b32 s{SWS+3}, 0x20000
    """)
    def qload():
        r = [f"s_lshl_b32 s{t0}, s{sHd}, 20", f"s_lshl_b32 s{t1}, s{sBlk}, 16", f"s_add_u32 s{t0}, s{t0}, s{t1}",
             f"s_lshl_b32 s{t1}, s{sW}, 13", f"s_add_u32 s{t0}, s{t0}, s{t1}", f"s_add_u32 s{t0}, s{t0}, {Q_OFF}"]
        for qs in range(2):
            for hf in range(2):
                if qs or hf: r.append(f"s_add_u32 s{t1}, s{t0}, {qs * 32768 + hf * 4096}")
                for j in range(4):
                    r.append(f"buffer_load_dwordx4 {Q(qs, 4 * hf + j)}, v{vL16}, {sr(SWS,4)}, s{t1 if (qs or hf) else t0} offen offset:{j * 1024}")
        return r
    a.ext(m0set(1, False)); a("s_nop 0"); a.ext(dma(1, False)); a.ext(adv_wr(False))
    a.ext(qload())
    for k in range(2):
        for h in range(2):
            a.ext(m0set(h, False)); a("s_nop 0"); a.ext(dma(h, False))
        a.ext(adv_wr(False))
    a.ext(m0set(0, False)); a("s_nop 0"); a.ext(dma(0, False))
    a(f"""
    s_mul_i32 s{t0}, s{sHd}, {256*896}
    s_add_u32 s{SWO}, s{pWO}, s{t0}
    s_addc_u32 s{SWO+1}, s{pWO+1}, 0
    s_mov_b32 s{SWO+2}, {256*896}
    s_mov_b32 s{SWO+3}, 0x20000
    s_mov_b32 s{SDBG}, s{pDBG}
    s_mov_b32 s{SDBG+1}, s{pDBG+1}
    s_mov_b32 s{SDBG+2}, 256
    s_mov_b32 s{SDBG+3}, 0x20000
    s_mov_b32 s{SPT}, s{pWS}
    s_mov_b32 s{SPT+1}, s{pWS+1}
    s_mov_b32 s{SPT+2}, 0
    s_mov_b32 s{SPT+3}, 0x20000
    s_mov_b32 s{sWoS}, 0
    s_mov_b32 s{sRd}, 0
    s_mov_b32 s{sThr}, 0x{f32hex(opt.get('thr', THR))}
    s_mov_b32 s{sPub}, 0
    s_mov_b32 s{sSeen}, 0
    s_mov_b32 s{sRet}, 0
    s_mov_b32 s{sMask}, 0xffff0000
    s_lshl_b32 s{sBit}, 1, s{sI}
    s_lshl_b32 s{t0}, s{sHd}, 3
    s_add_u32 s{t0}, s{t0}, s{sI}
    s_lshl_b32 s{t0}, s{t0}, 2
    s_add_u32 s{t0}, s{t0}, s{sW}
    s_mul_i32 s{sPart}, s{t0}, {17*1024}
    s_add_u32 s{sPart}, s{sPart}, {PART_OFF}
    v_mov_b32 v{vRd}, v{vL16}
    v_lshrrev_b32 v{vT0}, 3, v1
    s_lshl_b32 s{t0}, s{sW}, 5
    v_add_u32 v{vT0}, s{t0}, v{vT0}
    v_mul_u32_u24 v{vT0}, 896, v{vT0}
    v_bfe_u32 v{vT1}, v1, 1, 2
    v_lshrrev_b32 v{vT2}, 4, v1            ; g
    v_xor_b32 v{vT1}, v{vT1}, v{vT2}
    v_lshl_add_u32 v{vT0}, v{vT1}, 5, v{vT0}
    v_and_b32 v{vT1}, 1, v1
    v_lshl_add_u32 v{vWo}, v{vT1}, 4, v{vT0}
    """)
    for j in range(1, 4): a(f"v_add_u32 v{vWo+j}, {6144*j}, v{vWo}")
    a(f"""
    v_lshrrev_b32 v{vT0}, 2, v1
    v_lshlrev_b32 v{vT0}, 7, v{vT0}
    v_and_b32 v{vT1}, 3, v1
    v_lshl_add_u32 v{vT0}, v{vT1}, 3, v{vT0}
    v_bfe_u32 v{vT1}, v1, 3, 2
    """)
    for mt in range(4):
        a(f"v_xor_b32 v{vT3}, {mt}, v{vT1}")
        a(f"v_lshl_add_u32 v{vTl+mt}, v{vT3}, 5, v{vT0}")
    a(f"""
    v_and_b32 v{vT0}, 15, v1
    s_lshl_b32 s{t0}, s{sW}, 4
    v_add_u32 v{vT0}, s{t0}, v{vT0}
    v_lshlrev_b32 v{vT2}, 2, v{vT2}
    v_sub_u32 v{vT0}, v{vT0}, v{vT2}
    v_mov_b32 v{vT1}, 0x{f32hex(NEG)}
    """)
    for k in range(2):
        for kt in range(2):
            for r in range(4):
                sp = 56 + 2 * (r & 1)
                a(f"v_cmp_gt_i32 s[{sp}:{sp+1}], {32*k+16*kt+r}, v{vT0}")
                if r & 1:
                    a("s_nop 0")
                    a(f"v_cndmask_b32 v{MB(k,kt)+r-1}, 0, v{vT1}, s[56:57]")
                    a(f"v_cndmask_b32 v{MB(k,kt)+r}, 0, v{vT1}, s[58:59]")
    ZIN = list(range(128, 128 + 52))
    ZPRE = list(range(128 + 52, 256))
    for r in ZPRE: a(f"v_mov_b32 v{r}, 0")
    for r in range(8): a(f"v_mov_b32 v{CM(0)+r}, 0")
    a("s_waitcnt vmcnt(20)\ns_barrier")
    stamp(0)
    for f in A_ENTRY: a(rdK(f)[0])
    a.label(f"{N}_pro")
    sch.reset(A_ENTRY)
    dg = [21, 23, 25, 27]
    sch.phase(qk(0, [0, 1], lambda kt, qs: vr(CM(kt), 4) if qs == 0 else "0"),
              {2 * k: [rdK(10 + k)] for k in range(6)},
              [(0, f"v_mov_b32 v{r}, 0", 1) for r in ZIN],
              scal=[(0, t) for t in adv_rd()] + [(dg[3], t) for t in adv_wr(False)],
              fixed={dg[0] - 1: m0set(1, False)}, fixedv={g: [d] for g, d in zip(dg, dma(1, False))})
    a(UPD)
    a(f"""
    s_cmp_eq_u32 s{sPub}, 0
    s_cbranch_scc1 {N}_pro_n
    s_waitcnt vmcnt(4)
    s_barrier
    s_cmp_lg_u32 s{sW}, 0
    s_cbranch_scc1 {N}_pro_j
    v_mov_b32 v{vT0}, s{sBit}
    v_mov_b32 v{vT1}, 0
    s_lshl_b32 s{t0}, s{sHd}, 2
    s_mov_b64 exec, 1
    buffer_atomic_or v{vT0}, v{vT1}, {sr(SDBG,4)}, s{t0} offen sc1
    s_mov_b64 exec, -1
    s_branch {N}_pro_j
    """)
    a.label(f"{N}_pro_n")
    a("s_waitcnt vmcnt(16)\ns_barrier")
    a.label(f"{N}_pro_j")
    a.ext(m0set(0, False))
    for f in A_ENTRY: a(rdK(f)[0])
    a.ext(dma(0, False))
    def rowmax(p):
        for qs in range(2):
            s = [S(p, kt, qs) + r for kt in range(2) for r in range(4)]
            m = vT0 + qs
            a(f"v_max3_f32 v{m}, v{s[0]}, v{s[1]}, v{s[2]}")
            a(f"v_max3_f32 v{m}, v{m}, v{s[3]}, v{s[4]}")
            a(f"v_max3_f32 v{m}, v{m}, v{s[5]}, v{s[6]}")
            a(f"v_max_f32 v{m}, v{m}, v{s[7]}")
        xl(vT0, "max")
    def xl(m, op):
        for sw in ("32", "16"):
            a(f"v_mov_b32 v{vT2}, v{m}\nv_mov_b32 v{vT3}, v{m+1}\ns_nop 0")
            a(f"v_permlane{sw}_swap_b32 v{m}, v{vT2}\nv_permlane{sw}_swap_b32 v{m+1}, v{vT3}")
            a(f"v_{op}_f32 v{m}, v{m}, v{vT2}\nv_{op}_f32 v{m+1}, v{m+1}, v{vT3}")
    def plain(v):
        pt = False
        for x in v:
            if pt and x[2] == 1: a("s_nop 0")
            a(x[1]); pt = x[2] == 2
    def expw_plain(p, qs):
        v = expw(p, qs)
        plain([x for x in v if x[2] == 2] + [x for x in v if x[2] == 1])
    rowmax(0)
    for qs in range(2):
        for kt in range(2):
            for r in range(4): a(f"v_sub_f32 v{S(0,kt,qs)+r}, v{S(0,kt,qs)+r}, v{vT0+qs}")
    expw_plain(0, 0)
    for qs in range(2):
        for r in range(4): a(f"v_sub_f32 v{NEGM(qs)+r}, 0, v{vT0+qs}")
        a(f"v_mov_b32 v{vL+qs}, 0")
    a(f"""
    s_lshr_b32 s{sCnt}, s{sN}, 1
    s_lshl_b32 s{t0}, s{sSeg}, 1
    s_add_u32 s{sCnt}, s{sCnt}, s{t0}
    s_sub_u32 s{sCnt}, s{sCnt}, 3
    s_cbranch_scc0 {N}_loop
    """)
    plain(cm_ops(0, 1))
    a(f"s_branch {N}_T1")
    a(".p2align 6")
    a.label(f"{N}_loop")
    phaseA(0, "le")
    phaseB(0, post=[f"s_sub_u32 s{sCnt}, s{sCnt}, 1"])
    a(f"s_cbranch_scc1 {N}_exit")
    phaseA(1, "lo")
    phaseB(1)
    a(f"s_branch {N}_loop")
    a.label(f"{N}_L1")
    a(f"s_mov_b32 s{sBlk}, s{sI}")
    for f in B_ENTRY: a(rdV(f)[0])
    a.ext(qload())
    a.ext(m0set(1, False))
    expw_plain(1, 1)
    a.ext(dma(1, False)); a.ext(adv_wr(False))
    plain(check_ops())
    a(f"s_mov_b32 s{sRet}, {len(sites[1])}")
    branch_check(1, "L1")
    phaseB(1, expq=None, vm=32)
    a(f"v_mov_b32 v{vL+2}, v{NEGM(0)}\nv_mov_b32 v{vL+3}, v{NEGM(1)}")
    a(f"s_add_u32 s{t0}, s{sPart}, 16384")
    a(f"buffer_store_dwordx4 {vr(vL,4)}, v{vL16}, {sr(SWS,4)}, s{t0} offen sc1")
    def cvt_block(b):
        for r in range(4): a(f"v_cvt_pk_bf16_f32 v{b+r}, v{b+2*r}, v{b+2*r+1}")
    pend = []
    for k in range(16):
        b = 128 + 8 * k
        if k % 4 == 0: a(f"s_add_u32 s{t0}, s{sPart}, {k*1024}")
        cvt_block(b)
        a(f"buffer_store_dwordx4 {vr(b,4)}, v{vL16}, {sr(SWS,4)}, s{t0} offen offset:{(k%4)*1024} sc1")
    for r in ZPRE: a(f"v_mov_b32 v{r}, 0")
    a(f"""
    s_mov_b32 s{sSeg}, 0
    s_mov_b32 s{sPub}, 1
    s_mov_b32 s{sSrcEnd}, -1
    s_lshl_b32 s{sN}, s{sI}, 2
    s_add_u32 s{sN}, s{sN}, 4
    s_cmp_eq_u32 s{sI}, 0
    s_cselect_b32 s{t0}, 1.0, 0
    """)
    for r in range(8): a(f"v_mul_f32 v{CM(0)+r}, s{t0}, v{MB(0,0)+r}")
    a(f"s_waitcnt vmcnt(25)")
    stamp(1)
    a(f"s_branch {N}_pro")
    a.label(f"{N}_exit")
    a(f"s_cmp_lg_u32 s{sSeg}, 0\ns_cbranch_scc1 {N}_L1")
    stamp(2)
    plain(cm_ops(0, 0))
    def poll_issue():
        a(f"s_lshl_b32 s{t0}, s{sHd}, 2")
        a(f"buffer_load_dword v{vPm}, off, {sr(SDBG,4)}, s{t0} sc1")
    def part_loads():
        a(f"s_add_u32 s{t0}, s{sPart}, 16384")
        a(f"buffer_load_dwordx4 {vr(vPm,4)}, v{vL16}, {sr(SPT,4)}, s{t0} offen sc1")
        for k in range(16):
            if k % 4 == 0: a(f"s_add_u32 s{t0}, s{sPart}, {k*1024}")
            a(f"buffer_load_dwordx4 {ar(128+4*k,4)}, v{vL16}, {sr(SPT,4)}, s{t0} offen offset:{(k%4)*1024} sc1")
    poll_issue()
    phaseA(1, "T0", cinit=masked_c(0))
    phaseB(1, extra=cm_ops(0, 1))
    a(f"""
    s_cmp_eq_u32 s{sComb}, 0
    s_cbranch_scc1 {N}_T1
    s_waitcnt vmcnt(8)
    v_readfirstlane_b32 s{t1}, v{vPm}
    s_and_b32 s{sSeen}, s{t1}, s{sBit}
    s_cselect_b32 s{SPT+2}, {WS_BYTES}, 0
    """)
    a.label(f"{N}_T1")
    part_loads()
    phaseA(0, "T1", cinit=masked_c(0))
    phaseB(0, extra=cm_ops(1, 0), wo=True, vm=33)
    phaseA(1, "T2", cinit=masked_c(1), half=True, wo=True)
    phaseB(1, expq=1, extra=cm_ops(1, 1), wo=True, vm=33)
    phaseA(0, "T3", cinit=masked_c(1), half=True, expq=None, wo=True)
    phaseB(0, half=True, accq=(1,), expq=1, wo=True, nxt="V")
    a.ext(m0set(1, True))
    plain(check_ops())
    a.ext(dma(1, True)); a.ext(adv_wr(True))
    a(f"s_mov_b32 s{sRet}, {len(sites[1])}")
    branch_check(1, "T4")
    phaseB(1, half=True, accq=(1,), expq=None, wo=True, nxt="W")
    stamp(3)
    a(f"s_cmp_eq_u32 s{sComb}, 0\ns_cbranch_scc1 {N}_nocomb")
    a(f"s_cmp_lg_u32 s{sSeen}, 0\ns_cbranch_scc1 {N}_seen")
    a.label(f"{N}_spin")
    poll_issue()
    a(f"""
    s_waitcnt vmcnt(0)
    v_readfirstlane_b32 s{t1}, v{vPm}
    s_and_b32 s{t1}, s{t1}, s{sBit}
    s_cbranch_scc0 {N}_spin
    s_mov_b32 s{SPT+2}, {WS_BYTES}
    """)
    part_loads()
    a("s_waitcnt vmcnt(0)")
    a.label(f"{N}_seen")
    a(f"""
    s_waitcnt vmcnt(28)
    v_sub_f32 v{vT0}, v{NEGM(0)}, v{vPm+2}
    v_sub_f32 v{vT1}, v{NEGM(1)}, v{vPm+3}
    v_max_f32 v{vT2}, v{vT0}, v{vT1}
    v_cmp_lt_f32 vcc, 0x{f32hex(opt.get('cthr', 16.0))}, v{vT2}
    s_cbranch_vccz {N}_cmb
    v_max_f32 v{vT2}, 0, v{vT0}
    v_max_f32 v{vT3}, 0, v{vT1}
    v_sub_f32 v{vT0}, v{vT0}, v{vT2}
    v_sub_f32 v{vT1}, v{vT1}, v{vT3}
    v_exp_f32 v{vT2}, -v{vT2}
    v_exp_f32 v{vT3}, -v{vT3}
    s_nop 0
    """)
    for qs in range(2):
        a(f"v_mul_f32 v{vL+qs}, v{vL+qs}, v{vT2+qs}")
        for dk in range(8):
            for r in range(8): a(f"v_mul_f32 v{OB(dk,qs)+r}, v{OB(dk,qs)+r}, v{vT2+qs}")
    a.label(f"{N}_cmb")
    a(f"v_exp_f32 v{vT0}, v{vT0}\nv_exp_f32 v{vT1}, v{vT1}\ns_nop 0")
    a(f"v_fmac_f32 v{vL}, v{vPm}, v{vT0}\nv_fmac_f32 v{vL+1}, v{vPm+1}, v{vT1}")
    for dk in range(8):
        for qs in range(2):
            b = OB(dk, qs)
            for r in range(4): a(f"v_accvgpr_read_b32 v{vE+r}, a{PP(dk,qs)+r}")
            for r in range(4):
                a(f"v_lshlrev_b32 v{vE+4+r}, 16, v{vE+r}")
                a(f"v_and_b32 v{vE+r}, s{sMask}, v{vE+r}")
            for r in range(4):
                a(f"v_fmac_f32 v{b+2*r}, v{vE+4+r}, v{vT0+qs}")
                a(f"v_fmac_f32 v{b+2*r+1}, v{vE+r}, v{vT0+qs}")
    a.label(f"{N}_nocomb")
    stamp(4)
    xl(vL, "add")
    a(f"""
    v_rcp_f32 v{vL}, v{vL}
    v_rcp_f32 v{vL+1}, v{vL+1}
    v_lshrrev_b32 v{vT0}, 2, v{vL16}
    s_lshl_b32 s{t0}, s{sHd}, 7
    s_lshl_b32 s{t1}, s{sBlk}, 3
    s_add_u32 s{t0}, s{t0}, s{t1}
    s_add_u32 s{t0}, s{t0}, s{sW}           ; h*128 + qsub
    s_lshl_b32 s{t1}, s{t0}, 6
    s_add_u32 s{t1}, s{t1}, {RL_OFF}
    s_mul_i32 s{sSt0}, s{t0}, {14*1024}
    s_add_u32 s{sSt0}, s{sSt0}, {SL_OFF}
    s_mov_b32 s{sSt1}, {DUMMY_OFF}
    s_mov_b64 exec, 0xffff
    buffer_store_dword v{vL}, v{vT0}, {sr(SWS,4)}, s{t1} offen
    buffer_store_dword v{vL+1}, v{vT0}, {sr(SWS,4)}, s{t1} offen offset:256
    s_mov_b64 exec, -1
    v_add_u32 v{vT1}, {4*14*1024}, v{vL16}
    s_mov_b32 s{sCnt}, 6
    """)
    for qs in range(2):
        for dk in range(8): cvt_block(OB(dk, qs))
    def outw(pr, soff, g0):
        v = []
        for qs in range(2):
            o = vOut + 4 * qs
            for r in range(4):
                s = S(pr, r >> 1, qs) + 2 * (r & 1)
                v.append((g0, f"v_cvt_pk_bf16_f32 v{o+r}, v{s}, v{s+1}", 1))
            v.append((g0, f"buffer_store_dwordx4 {vr(o,4)}, v{vL16 if qs == 0 else vT1}, {sr(SWS,4)}, s{soff} offen offset:{pr*1024}", 1))
        return v
    a(".p2align 6")
    a.label(f"{N}_oloop")
    sch.reset([100 + f for f in range(10) for _ in range(2)])
    mf = []
    for mt in range(4):
        for qs in range(2):
            for dk in range(8):
                d = S(mt >> 1, mt & 1, qs)
                mf.append((mm(d, F(mt * 8 + dk), vr(OB(dk, qs), 4), "0" if dk == 0 else vr(d, 4)), 100 + mt * 8 + dk))
    reads = {}
    for k in range(32):
        f = (10 + k) % 32
        rr = rdW(f)
        if k >= 22: rr = [(t, 300 + f) for t, _ in rr]
        reads[2 * k] = [rr[0]]; reads[2 * k + 1] = [rr[1]]
    d1, d0 = [21, 23, 25, 27], [53, 55, 57, 59]
    fv = {g: [d] for g, d in zip(d1 + d0, dma(1, True) + dma(0, True))}
    fv[30] = [UPDW[0]]; fv[31] = [UPDW[1]]; fv[32] = [UPDW[2]]; fv[44] = [UPDW[3]]
    sch.phase(mf, reads, outw(1, sSt1, 4) + outw(0, sSt0, 36),
              scal=[(8, t) for t in adv_rd()] + [(27, t) for t in adv_wr(True)] +
                   [(56, f"s_mov_b32 s{sSt1}, s{sSt0}"), (56, f"s_add_u32 s{sSt0}, s{sSt0}, 2048"), (60, f"s_sub_u32 s{sCnt}, s{sCnt}, 1")],
              fixed={20: m0set(1, True), 44: ["s_waitcnt vmcnt(16)", "s_barrier"], 52: m0set(0, True)}, fixedv=fv)
    a(f"s_cbranch_scc0 {N}_oloop")
    a("s_nop 4")
    plain(outw(1, sSt1, 0))
    if opt.get("stamp"):
        a(f"""
        s_waitcnt vmcnt(0)
        s_memtime s[{sTm+4}:{sTm+5}]
        s_memrealtime s[{sTm+6}:{sTm+7}]
        s_waitcnt lgkmcnt(0)
        s_sub_u32 s{t0}, s{sTm+4}, s{sTm}
        s_sub_u32 s{t1}, s{sTm+6}, s{sTm+2}
        v_mov_b32 v24, s{t0}
        v_mov_b32 v25, s{t1}
        v_mov_b32 v26, s{sTm+2}
        v_mov_b32 v27, s{sTm+6}
        s_lshl_b32 s{t2}, s2, 6
        s_lshl_b32 s{t3}, s{sW}, 4
        s_add_u32 s{t2}, s{t2}, s{t3}
        s_add_u32 s{t2}, s{t2}, {STAMP_OFF + MB_}
        v_mov_b32 v28, 0
        s_mov_b64 exec, 1
        buffer_store_dwordx4 v[24:27], v28, {sr(SWS,4)}, s{t2} offen
        """)
        for blk in range(2):
            for k in range(4):
                i = blk * 4 + k
                if i < 5:
                    a(f"s_sub_u32 s{t0}, s{sTm+8+2*i}, s{sTm}\nv_mov_b32 v{4+4*blk+k}, s{t0}")
                else:
                    a(f"v_mov_b32 v{4+4*blk+k}, s{sSeen}")
            a(f"s_add_u32 s{t2}, s{t2}, 65536")
            a(f"buffer_store_dwordx4 v[{4+4*blk}:{7+4*blk}], v28, {sr(SWS,4)}, s{t2} offen")
    a.label(f"{N}_done")
    a("s_endpgm")
    for p in range(2):
        a.label(f"{N}_rare{p}")
        a("s_nop 7")
        rowmax(p)
        a(f"v_max_f32 v{vT0}, 0, v{vT0}\nv_max_f32 v{vT1}, 0, v{vT1}")
        a(f"v_exp_f32 v{vT2}, -v{vT0}\nv_exp_f32 v{vT3}, -v{vT1}")
        for qs in range(2):
            for pp in range(2):
                for kt in range(2):
                    for r in range(4): a(f"v_sub_f32 v{S(pp,kt,qs)+r}, v{S(pp,kt,qs)+r}, v{vT0+qs}")
            for r in range(4): a(f"v_sub_f32 v{NEGM(qs)+r}, v{NEGM(qs)+r}, v{vT0+qs}")
            a(f"v_mul_f32 v{vL+qs}, v{vL+qs}, v{vT2+qs}")
            for dk in range(8):
                for r in range(8): a(f"v_mul_f32 v{OB(dk,qs)+r}, v{OB(dk,qs)+r}, v{vT2+qs}")
            expw_plain(p, qs)
        for k, tag in enumerate(sites[p][:-1]):
            a(f"s_cmp_eq_u32 s{sRet}, {k}\ns_cbranch_scc1 {N}_ret_{tag}")
        a(f"s_branch {N}_ret_{sites[p][-1]}")
    return a.text(), kernel_desc(N, 256 + 192, 100, 256), f"; @launch kernel={N} grid=(256,1,1) block=(256,1,1) lds=163840"
MB_ = 1 << 20
```

```python
from asmlib import *
from layout import *
from k0 import f32hex

vL16, vRl4, vXo = 2, 3, 4
vWd = 5
vTr = 9
vT0, vT1, vT2, vT3 = 13, 14, 15, 16
vX = 20
vS = 24
vRL = 32
ACC = 48
WF = 112
HF = 144
SWS, SWD, SX, SO = 8, 12, 16, 20
pX, pWD, pO, pWS = 24, 26, 28, 30
sW, sRb, sCb, sLds, sWs, sH, sMask = 32, 33, 34, 35, 36, 37, 38
t0, t1, t2, t3 = 40, 41, 42, 43
sTm = 60
PRIV = 20480

def gen_k3(name="fin_kernel", opt=None):
    opt = opt or {}
    a = Asm(); N = name
    a(f".p2align 8\n.globl {N}\n.type {N},@function")
    a.label(N)
    a(f"s_cmp_ge_u32 s2, 224\ns_cbranch_scc1 {N}_done")
    if opt.get("stamp"): a(f"s_memtime s[{sTm}:{sTm+1}]\ns_memrealtime s[{sTm+2}:{sTm+3}]")
    a(f"""
    s_load_dwordx2 s[{pWS}:{pWS+1}], s[0:1], 96
    s_load_dwordx2 s[{pX}:{pX+1}], s[0:1], 0
    s_load_dwordx2 s[{pWD}:{pWD+1}], s[0:1], 72
    s_load_dwordx2 s[{pO}:{pO+1}], s[0:1], 80
    v_lshrrev_b32 v1, 6, v0
    s_and_b32 s{t0}, s2, 7
    v_readfirstlane_b32 s{sW}, v1
    v_and_b32 v1, 63, v0
    s_lshr_b32 s{t1}, s2, 3
    s_mul_i32 s{t2}, s{t1}, 37
    s_lshr_b32 s{t2}, s{t2}, 8            ; k/7
    s_mul_i32 s{t3}, s{t2}, 7
    s_sub_u32 s{sCb}, s{t1}, s{t3}
    s_lshl_b32 s{sRb}, s{t0}, 2
    s_add_u32 s{sRb}, s{sRb}, s{t2}
    v_lshlrev_b32 v{vL16}, 4, v1
    v_and_b32 v{vT0}, 15, v1
    v_lshlrev_b32 v{vRl4}, 2, v{vT0}
    s_lshr_b32 s{t0}, s{sW}, 1
    s_lshl_b32 s{t1}, s{sRb}, 2
    s_add_u32 s{t0}, s{t0}, s{t1}         ; qsub
    s_and_b32 s{t1}, s{sW}, 1
    s_lshl_b32 s{t2}, s{sCb}, 1
    s_add_u32 s{t1}, s{t1}, s{t2}         ; mp
    s_mul_i32 s{t2}, s{t0}, 14
    s_add_u32 s{t2}, s{t2}, s{t1}
    s_lshl_b32 s{t2}, s{t2}, 10
    s_add_u32 s{t2}, s{t2}, {SL_OFF}
    s_lshl_b32 s{t3}, s{t0}, 6
    s_add_u32 s{t3}, s{t3}, {RL_OFF}
    s_waitcnt lgkmcnt(0)
    s_mov_b32 s{SWS}, s{pWS}
    s_mov_b32 s{SWS+1}, s{pWS+1}
    s_mov_b32 s{SWS+2}, {WS_BYTES}
    s_mov_b32 s{SWS+3}, 0x20000
    """)
    for h in range(16):
        a(f"buffer_load_dwordx4 {vr(ACC+4*h,4)}, v{vL16}, {sr(SWS,4)}, s{t2} offen")
        a(f"buffer_load_dword v{vRL+h}, v{vRl4}, {sr(SWS,4)}, s{t3} offen")
        if h < 15:
            a(f"s_add_u32 s{t2}, s{t2}, {128*14*1024}")
            a(f"s_add_u32 s{t3}, s{t3}, 8192")
    a(f"""
    s_mov_b32 s{SWD}, s{pWD}
    s_mov_b32 s{SWD+1}, s{pWD+1}
    s_mov_b32 s{SWD+2}, {1792*896}
    s_mov_b32 s{SWD+3}, 0x20000
    s_mov_b32 s{SX}, s{pX}
    s_mov_b32 s{SX+1}, s{pX+1}
    s_mov_b32 s{SX+2}, {XN_BYTES}
    s_mov_b32 s{SX+3}, 0x20000
    s_mov_b32 s{SO}, s{pO}
    s_mov_b32 s{SO+1}, s{pO+1}
    s_mov_b32 s{SO+2}, {XN_BYTES}
    s_mov_b32 s{SO+3}, 0x20000
    s_mul_i32 s{t0}, s{t0}, {16*896}
    s_lshl_b32 s{t1}, s{t1}, 6
    s_add_u32 s{t0}, s{t0}, s{t1}
    v_mul_u32_u24 v{vXo}, 896, v{vT0}
    v_lshrrev_b32 v{vT2}, 4, v1
    v_lshl_add_u32 v{vXo}, v{vT2}, 3, v{vXo}
    v_add_u32 v{vXo}, s{t0}, v{vXo}
    v_lshrrev_b32 v{vT0}, 3, v1
    v_mul_u32_u24 v{vT0}, 896, v{vT0}
    v_bfe_u32 v{vT1}, v1, 1, 2
    v_xor_b32 v{vT1}, v{vT1}, v{vT2}
    v_lshl_add_u32 v{vT0}, v{vT1}, 5, v{vT0}
    v_and_b32 v{vT1}, 1, v1
    v_lshl_add_u32 v{vWd}, v{vT1}, 4, v{vT0}
    s_mul_i32 s{sLds}, s{sW}, {PRIV}
    s_mul_i32 s{sWs}, s{sW}, {7*32*896}
    s_lshl_b32 s{t0}, s{sCb}, 7
    s_add_u32 s{sWs}, s{sWs}, s{t0}
    s_mul_i32 s{sH}, s{sRb}, {4*56}
    s_mul_i32 s{t0}, s{sW}, 7
    s_add_u32 s{sH}, s{sH}, s{t0}
    s_lshl_b32 s{sH}, s{sH}, 10
    s_add_u32 s{sH}, s{sH}, {H_OFF}
    s_mov_b32 s{sMask}, 0xffff0000
    """)
    for j in range(1, 4): a(f"v_add_u32 v{vWd+j}, {6144*j}, v{vWd}")
    def wdma(fk):
        a(f"s_add_u32 m0, s{sLds}, {(fk % 5) * 4096}")
        a(f"s_add_u32 s{t0}, s{sWs}, {fk*32*896}")
        for j in range(4):
            a(f"buffer_load_dwordx4 v{vWd+j}, {sr(SWD,4)}, s{t0} offen offset:{j*1024} lds")
    def hload(fk):
        for qs in range(4):
            a(f"s_add_u32 s{t1}, s{sH}, {qs*56*1024 + (fk & ~3)*1024}")
            a(f"buffer_load_dwordx4 {vr(HF+16*fk+4*qs,4)}, v{vL16}, {sr(SWS,4)}, s{t1} offen offset:{(fk&3)*1024}")
    for fk in range(3): wdma(fk); hload(fk)
    a(f"""
    v_lshrrev_b32 v{vT0}, 2, v1
    v_lshlrev_b32 v{vT0}, 7, v{vT0}
    v_and_b32 v{vT1}, 3, v1
    v_lshl_add_u32 v{vT0}, v{vT1}, 3, v{vT0}
    v_add_u32 v{vT0}, s{sLds}, v{vT0}
    v_bfe_u32 v{vT1}, v1, 3, 2
    """)
    for mt in range(4):
        a(f"v_xor_b32 v{vT3}, {mt}, v{vT1}")
        a(f"v_lshl_add_u32 v{vTr+mt}, v{vT3}, 5, v{vT0}")
    def slab(h):
        for r in range(4):
            s = ACC + 4 * h + r
            a(f"v_lshlrev_b32 v{vT0}, 16, v{s}")
            a(f"v_and_b32 v{vT1}, s{sMask}, v{s}")
            if h == 0:
                a(f"v_mul_f32 v{vS+2*r}, v{vT0}, v{vRL}\nv_mul_f32 v{vS+2*r+1}, v{vT1}, v{vRL}")
            else:
                a(f"v_fmac_f32 v{vS+2*r}, v{vT0}, v{vRL+h}\nv_fmac_f32 v{vS+2*r+1}, v{vT1}, v{vRL+h}")
    a("s_waitcnt vmcnt(40)")
    for fk in range(3, 5): wdma(fk); hload(fk)
    for h in range(8): slab(h)
    a("s_waitcnt vmcnt(40)")
    hload(5); hload(6)
    a(f"buffer_load_dwordx2 {vr(vX,2)}, v{vXo}, {sr(SX,4)}, 0 offen")
    a(f"buffer_load_dwordx2 {vr(vX+2,2)}, v{vXo}, {sr(SX,4)}, 0 offen offset:32")
    for h in range(8, 16): slab(h)
    def wread(fk):
        for mt in range(4):
            for t in range(2):
                b = WF + 16 * (fk & 1) + 4 * mt + 2 * t
                a(f"ds_read_b64_tr_b16 {vr(b,2)}, v{vTr+mt} offset:{(fk % 5)*4096 + t*2048}")
    def mf(fk):
        for mt in range(4):
            for qs in range(4):
                d = ACC + 16 * qs + 4 * mt
                a(f"v_mfma_f32_16x16x32_bf16 {vr(d,4)}, {vr(WF+16*(fk&1)+4*mt,4)}, {vr(HF+16*fk+4*qs,4)}, {'0' if fk == 0 else vr(d,4)}")
    waits = {0: 42, 1: 34, 2: 30, 3: 26, 4: 18, 5: 4, 6: 0}
    a(f"s_waitcnt vmcnt({waits[0]})"); wread(0)
    for fk in range(7):
        if fk < 6:
            a(f"s_waitcnt vmcnt({waits[fk+1]})"); wread(fk + 1)
            a("s_waitcnt lgkmcnt(8)")
        else:
            a("s_waitcnt lgkmcnt(0)")
        if fk < 2: wdma(fk + 5)
        mf(fk)
    a(f"v_add_u32 v{vT0}, s{sLds}, v{vL16}")
    a(f"s_lshl_b32 s{t0}, s{sW}, 11")
    a(f"v_add_u32 v{vT1}, s{t0}, v{vL16}")
    a(f"v_add_u32 v{vT2}, {3*PRIV}, v{vT1}")
    a(f"v_add_u32 v{vT3}, {6*PRIV}, v{vT1}")
    order = [qs * 4 + mt for mt in range(4) for qs in range(4)]
    for t in order:
        a(f"ds_write_b128 v{vT0}, {vr(ACC+4*t,4)} offset:{t*1024}")
    a("s_waitcnt lgkmcnt(0)\ns_barrier")
    for w in range(8):
        for t in range(2):
            a(f"ds_read_b128 {vr(HF+8*w+4*t,4)}, v{vT1 + w//3} offset:{(w%3)*PRIV + t*1024}")
    for w in range(1, 8):
        a(f"s_waitcnt lgkmcnt({14-2*w})")
        for r in range(8): a(f"v_add_f32 v{HF+r}, v{HF+r}, v{HF+8*w+r}")
    a(f"s_mov_b32 s{t0}, 0x{f32hex(1.0/QSCALE**2)}")
    for r in range(8): a(f"v_mul_f32 v{HF+r}, s{t0}, v{HF+r}")
    a(f"s_mov_b32 s{t0}, 0x{f32hex(-LOG2E)}")
    for r in range(8): a(f"v_mul_f32 v{WF+r}, s{t0}, v{HF+r}")
    for r in range(8): a(f"v_exp_f32 v{WF+r}, v{WF+r}")
    for r in range(8): a(f"v_mul_f32 v{vS+r}, v{vS+r}, v{HF+r}")
    for r in range(8): a(f"v_add_f32 v{WF+r}, 1.0, v{WF+r}")
    for r in range(8): a(f"v_rcp_f32 v{WF+r}, v{WF+r}")
    for r in range(4):
        a(f"v_lshlrev_b32 v{HF+2*r}, 16, v{vX+r}")
        a(f"v_and_b32 v{HF+2*r+1}, s{sMask}, v{vX+r}")
    for r in range(8): a(f"v_fmac_f32 v{HF+r}, v{vS+r}, v{WF+r}")
    for r in range(4): a(f"v_cvt_pk_bf16_f32 v{vX+r}, v{HF+2*r}, v{HF+2*r+1}")
    a(f"buffer_store_dwordx2 {vr(vX,2)}, v{vXo}, {sr(SO,4)}, 0 offen")
    a(f"buffer_store_dwordx2 {vr(vX+2,2)}, v{vXo}, {sr(SO,4)}, 0 offen offset:32")
    if opt.get("stamp"):
        a(f"""
        s_waitcnt vmcnt(0)
        s_memtime s[{sTm+4}:{sTm+5}]
        s_memrealtime s[{sTm+6}:{sTm+7}]
        s_waitcnt lgkmcnt(0)
        s_sub_u32 s{t0}, s{sTm+4}, s{sTm}
        s_sub_u32 s{t1}, s{sTm+6}, s{sTm+2}
        v_mov_b32 v24, s{t0}
        v_mov_b32 v25, s{t1}
        v_mov_b32 v26, s{sTm+2}
        v_mov_b32 v27, s{sTm+6}
        s_lshl_b32 s{t2}, s2, 7
        s_lshl_b32 s{t3}, s{sW}, 4
        s_add_u32 s{t2}, s{t2}, s{t3}
        s_add_u32 s{t2}, s{t2}, {STAMP_OFF + 2*MB}
        v_mov_b32 v28, 0
        s_mov_b64 exec, 1
        buffer_store_dwordx4 v[24:27], v28, {sr(SWS,4)}, s{t2} offen
        """)
    a.label(f"{N}_done")
    a("s_endpgm")
    return a.text(), kernel_desc(N, 256, 100, 256), f"; @launch kernel={N} grid=(224,1,1) block=(512,1,1) lds=163840"
```

```python
MB = 1 << 20
XN_OFF = 0
XN_BYTES = 2048 * 448 * 2
KV_OFF = 2 * MB
Q_OFF = 34 * MB
H_OFF = 50 * MB
SL_OFF = 58 * MB
PART_OFF = 88 * MB
STAMP_OFF = 128 * MB
WS_BYTES = 268435456
LOG2E = 1.4426950408889634
QSCALE = LOG2E / 16.0
RL_OFF = 87 * MB
DUMMY_OFF = 87 * MB + 512 * 1024
PART_STRIDE = 4 * 17 * 1024
```

```python
import sys, json
from k0 import gen_k0
from k1 import gen_k1
HDR = open("recurrent_scan__compressed_kv_cla__swiglu_ffn__prompt.s.ref").read().split("; Override launch")[0]
def build(ks):
    out = HDR
    for t, d, l in ks: out += l + "\n"
    out += '.amdgcn_target "amdgcn-amd-amdhsa--gfx950"\n.text\n'
    for t, d, l in ks: out += t
    out += '.section .rodata,"a"\n'
    for t, d, l in ks: out += ".p2align 6\n" + d
    return out
if __name__ == "__main__":
    opt = json.loads(sys.argv[2]) if len(sys.argv) > 2 else {}
    ks = [gen_k0(), gen_k1(opt=opt)]
    try:
        from k2 import gen_k2
        if not opt.get("only1"): ks.append(gen_k2(opt=opt))
        from k3 import gen_k3
        if not opt.get("only1") and not opt.get("only2"): ks.append(gen_k3(opt=opt))
    except ImportError:
        pass
    open(sys.argv[1], "w").write(build(ks))
```

```python
import os
MB = 1 << 20
BASE = int(os.environ.get('WSBASE', 0)) * MB
XN_OFF = 0
XN_BYTES = 2048 * 448 * 2
KV_OFF = BASE + 2 * MB
Q_OFF = BASE + 34 * MB
H_OFF = BASE + 50 * MB
SL_OFF = BASE + 58 * MB
PART_OFF = BASE + 88 * MB
STAMP_OFF = BASE + 97 * MB
WS_BYTES = 268435456
LOG2E = 1.4426950408889634
QSCALE = LOG2E / 16.0
RL_OFF = BASE + 87 * MB
DUMMY_OFF = BASE + 87 * MB + 512 * 1024
PART_STRIDE = 4 * 17 * 1024
```

```python
class Asm:
    def __init__(self):
        self.lines = []
        self._uid = 0
    def __call__(self, s):
        for l in s.split("\n"):
            l = l.strip()
            if l:
                self.lines.append(("    " + l) if not l.endswith(":") else l)
    def label(self, name):
        self.lines.append(name + ":")
    def uid(self, p="L"):
        self._uid += 1
        return f"{p}_{self._uid}"
    def ext(self, lst):
        for l in lst:
            self(l)
    def text(self):
        return "\n".join(self.lines) + "\n"

def vr(base, n=1, f="v"):
    return f"{f}{base}" if n == 1 else f"{f}[{base}:{base+n-1}]"
def ar(base, n=1):
    return vr(base, n, "a")
def sr(base, n=1):
    return vr(base, n, "s")

def interleave(mfmas, fillers):
    out = list(fillers.get(-1, []))
    for i, m in enumerate(mfmas):
        out.append(m)
        out.extend(fillers.get(i, []))
    return out

def kernel_desc(name, vgpr, sgpr, accum):
    return f""".amdhsa_kernel {name}
  .amdhsa_next_free_vgpr {vgpr}
  .amdhsa_next_free_sgpr {sgpr}
  .amdhsa_accum_offset {accum}
  .amdhsa_group_segment_fixed_size 0
  .amdhsa_kernarg_size 104
  .amdhsa_user_sgpr_count 2
  .amdhsa_user_sgpr_kernarg_segment_ptr 1
  .amdhsa_system_sgpr_workgroup_id_x 1
  .amdhsa_float_denorm_mode_32 3
  .amdhsa_float_denorm_mode_16_64 3
.end_amdhsa_kernel
"""

class Sched:
    def __init__(s, a):
        s.a = a; s.reset([]); s.vmq = []; s.nvm = 0
    def reset(s, frags):
        s.iss = list(frags); s.done = -1
    def wait_for(s, frag):
        ids = [i for i, f in enumerate(s.iss) if f == frag]
        if not ids or ids[-1] <= s.done: return None
        n = min(len(s.iss) - 1 - ids[-1], 15)
        s.done = len(s.iss) - 1 - n
        return f"s_waitcnt lgkmcnt({n})"
    def emit(s, t):
        if "@VM@" in t: t = t.replace("@VM@", str(min(s.nvm, 63)))
        if "@VT:" in t:
            tag = t.split("@VT:")[1].split("@")[0]
            ids = [i for i, f in enumerate(s.vmq) if f == tag]
            t = t.replace(f"@VT:{tag}@", str(min(len(s.vmq) - 1 - ids[-1], 63)))
        for l in t.split("\n"):
            if l.strip().startswith("buffer_"): s.vmq.append(l.split(";D ")[1].split()[0] if ";D " in l else "-")
        if "lgkmcnt(0)" in t: s.done = len(s.iss) - 1
        s.nvm += sum(1 for l in t.split("\n") if l.strip().startswith("buffer_"))
        s.a(t)
    def phase(s, mf, reads={}, valu=[], scal=[], fixed={}, fixedv={}, nvm0=0, carry=False):
        valu = list(valu); scal = list(scal); s.nvm = nvm0; s.over = 0
        e = s.emit
        w = s.wait_for(mf[0][1])
        if w: e(w)
        for g, (m, fr) in enumerate(mf):
            e(m)
            budget, shadow = 2, 1
            def sc(t):
                nonlocal budget, shadow
                e(t)
                if shadow: shadow = 0
                else: budget -= 1
            if g + 1 < len(mf):
                w = s.wait_for(mf[g + 1][1])
                if w: sc(w)
            for t in fixed.get(g, []): sc(t)
            if shadow and scal and scal[0][0] <= g: sc(scal.pop(0)[1])
            shadow = 0
            for t in fixedv.get(g, []): e(t); budget -= 1
            for t, f in reads.get(g, []): e(t); s.iss.append(f); budget -= 1
            while budget > 0:
                blocked = set(); pick = None
                for k, v in enumerate(valu):
                    grp = v[3] if len(v) > 3 else None
                    if grp in blocked: continue
                    if v[0] <= g and v[2] <= budget: pick = k; break
                    blocked.add(grp)
                if pick is None: break
                budget -= valu[pick][2]; e(valu.pop(pick)[1])
            if budget < 0: s.over -= budget
        if carry:
            for t in scal: e(t[1])
            return [(0,) + tuple(v[1:]) for v in valu]
        prev_trans = False
        for v in valu:
            if prev_trans and v[2] == 1: e("s_nop 0")
            e(v[1]); prev_trans = v[2] == 2; s.over += v[2]
        for t in scal: e(t[1])
```

```python
from asmlib import *
from layout import *
from k0 import f32hex

SW = [4, 8, 12, 16]; SX, SWS, SPF, SDBG, STMP = 20, 24, 28, 32, 36
pX, pC, pWQ, pWUK, pWUV, pWO, pWG, pWU, pWD, pOUT, pDBG, pWS = 40, 42, 44, 46, 48, 50, 54, 56, 58, 60, 62, 64
sW, sWreg, sH, sB = 66, 67, 68, 69
sXs, sWa, sWb, sPfz = 70, 71, 72, 73
sPf, sPfStg, sStg, sFlagStg = 74, 75, 76, 77
sSt = 78
t0, t1, t2, t3 = 86, 87, 88, 89
sTm = 90
vWA, vWG, vWB, vPf, vFo, vXo, vXr, vWr, vSt, vPoll = 2, 4, 6, 8, 9, 10, 14, 18, 20, 21
vFd = 23
vT = 24
def acc(o, n): return 32 + (o * 8 + n) * 4 if o < 7 else None
def accs(o, n): return vr(acc(o, n), 4) if o < 7 else ar(4 * n, 4)
def XF(par, n, ks): return ar(32 + par * 64 + (n * 2 + ks) * 4, 4)
def WF(o, ks, t=None):
    b = 160 + ((o & 3) * 2 + ks) * 4
    return ar(b, 4) if t is None else ar(b + 2 * t, 2)
def STASH(a, c, m): return 192 + ((a * 2 + c) * 4 + m) * 4
SG0 = [42, 50, 58, 66, 74, 82, 94, 102]
def wpiece(par, p): return (par ^ 1) * 4 + p

def rdW(par, o):
    return [(f"ds_read_b64_tr_b16 {WF(o, ks, t)}, v{vWr + (o & 1)} offset:{wpiece(par, (o >> 2) * 2 + ks) * 4096 + ((o >> 1) & 1) * 1024 + t * 256}", ("W", par, o, ks))
            for ks in range(2) for t in range(2)]
def rdX(par):
    return [(f"ds_read_b128 {XF(par, n, ks)}, v{vXr + (n >> 2) * 2 + ks} offset:{((n >> 1) & 1) * REG + par * 4096 + (n & 1) * 2048} ;R X{par}", ("X", par))
            for n in range(8) for ks in range(2)]
def dmaW(par, p, t2=False):
    return [f"buffer_load_dwordx4 v{(vWG if p < 2 and t2 else vWA) + (j >> 1)}, {sr(SW[(p & 2) + (j & 1)], 4)}, s{sWa if p < 2 else sWb} offen offset:{j * 1024} lds ;D P{p}{par}" for j in range(4)]
def dmaX(par):
    return [f"buffer_load_dwordx4 v{vXo + j}, {sr(SX, 4)}, s{sXs} offen offset:{j * 1024} lds ;D X{par}" for j in range(4)]
def m0p(i): return f"s_add_u32 m0, s{sWreg}, {i * 4096}"
def store(src, c, m, imm, srd=SWS, pol="sc1"): return f"buffer_store_dwordx4 {src}, v{vSt}, {sr(srd, 4)}, s{sSt + c * 4 + m} offen offset:{imm} {pol}"
def stash_store(k, pol):
    a, c, m = k >> 3, k & 1, (k >> 1) & 3
    return store(ar(STASH(a, c, m), 4), c, m, (1 + a) * 1024, SWS, pol)
POLL = f"buffer_load_dword v{vPoll}, v{vPoll+1}, {sr(SDBG, 4)}, 0 offen sc1"
def PF(k): return f"buffer_load_dword v{vT+7}, v{vPf}, {sr(SPF, 4)}, s{sPf} offen offset:{128 * k}"
OPT = {}
DG = [[33, 39, 45, 51], [57, 63, 69, 75], [97, 101, 105, 109], [113, 117, 121, 125]]
XG = [3, 9, 15, 21]
def vm_plan(par, t2=False):
    fv, fx = {}, {}
    for g, d in zip(XG, dmaX(par)): fv.setdefault(g, []).append(d)
    fx[XG[0] - 1] = [m0p(8 + par)]
    fx[XG[3] + 1] = [f"s_add_u32 s{sXs}, s{sXs}, 128"]
    for p in range(4):
        for g, d in zip(DG[p], dmaW(par, p, t2)): fv.setdefault(g, []).append(d)
        fx[DG[p][0] - 3] = [m0p(wpiece(par, p))]
        r = sWa if p < 2 else sWb
        fx.setdefault(DG[p][3] + (1 if p != 2 else 2), []).append(f"s_add_u32 s{r}, s{r}, {32 * (3584 if p < 2 and t2 else 8192)}")
    return fv, fx
def canon(par):
    fv, _ = vm_plan(par)
    return [(l.split(";D ")[1].split()[0] if ";D " in l else "-") for g in sorted(fv) for l in fv[g]]

def cvt(d, a, b): return f"v_cvt_pk_bf16_f32 v{d}, v{a}, v{b}"
def packA(A, B, g): return [(g, cvt(A, A, A + 1), 1), (g, cvt(A + 1, A + 2, A + 3), 1), (g, cvt(A + 2, B, B + 1), 1), (g, cvt(A + 3, B + 2, B + 3), 1)]
def packB(A, B, g): return [(g, cvt(B + 3, B + 2, B + 3), 1), (g, cvt(B + 2, B, B + 1), 1), (g, cvt(B, A, A + 1), 1), (g, cvt(B + 1, A + 2, A + 3), 1)]
def packTo(D, A, B, g): return [(g, cvt(D, A, A + 1), 1), (g, cvt(D + 1, A + 2, A + 3), 1), (g, cvt(D + 2, B, B + 1), 1), (g, cvt(D + 3, B + 2, B + 3), 1)]
def toStash(S, A, g): return [(g, f"v_accvgpr_write_b32 a{S + r}, v{A + r}", 1) for r in range(4)]
def fromAcc(D, n, g): return [(g, f"v_accvgpr_read_b32 v{D + r}, a{4 * n + r}", 1) for r in range(4)]

def ln2(a, R, X, T, s0):
    def both(f):
        for k in range(2): a(f(R + 4 * k, X + 8 * k, T + 3 * k))
    def wsum(off):
        for d in ("quad_perm:[1,0,3,2]", "quad_perm:[2,3,0,1]", "row_half_mirror", "row_mirror"):
            a("s_nop 0")
            both(lambda R, X, T: f"v_add_f32_dpp v{T+off}, v{T+off}, v{T+off} {d} row_mask:0xf bank_mask:0xf")
        for sw in ("16", "32"):
            both(lambda R, X, T: f"v_mov_b32 v{T+1}, v{T+off}")
            a("s_nop 0")
            both(lambda R, X, T: f"v_permlane{sw}_swap_b32 v{T+off}, v{T+1}")
            both(lambda R, X, T: f"v_add_f32 v{T+off}, v{T+off}, v{T+1}")
    def rnd(off):
        both(lambda R, X, T: f"v_cvt_pk_bf16_f32 v{T+off}, v{T+off}, v{T+off}")
        both(lambda R, X, T: f"v_lshlrev_b32 v{T+off}, 16, v{T+off}")
    def unpack():
        for i in range(4):
            both(lambda R, X, T: f"v_lshlrev_b32 v{X+2*i}, 16, v{R+i}\nv_and_b32 v{X+2*i+1}, 0xffff0000, v{R+i}")
    unpack()
    both(lambda R, X, T: f"v_add_f32 v{T}, v{X}, v{X+1}")
    for i in range(2, 8): both(lambda R, X, T: f"v_add_f32 v{T}, v{T}, v{X+i}")
    wsum(0)
    both(lambda R, X, T: f"v_mul_f32 v{T}, 0x{f32hex(1.0/448)}, v{T}")
    both(lambda R, X, T: f"v_sub_f32 v{T+1}, v{X}, v{T}\nv_mul_f32 v{T+2}, v{T+1}, v{T+1}")
    for i in range(1, 8): both(lambda R, X, T: f"v_sub_f32 v{T+1}, v{X+i}, v{T}\nv_fmac_f32 v{T+2}, v{T+1}, v{T+1}")
    both(lambda R, X, T: f"v_cndmask_b32 v{T+2}, 0, v{T+2}, vcc")
    wsum(2)
    both(lambda R, X, T: f"v_mul_f32 v{T+2}, 0x{f32hex(1.0/448)}, v{T+2}")
    rnd(0); rnd(2)
    both(lambda R, X, T: f"v_add_f32 v{T+2}, 0x{f32hex(1e-5)}, v{T+2}")
    rnd(2)
    both(lambda R, X, T: f"v_sqrt_f32 v{T+2}, v{T+2}")
    a("s_nop 0")
    rnd(2)
    both(lambda R, X, T: f"v_rcp_f32 v{T+2}, v{T+2}")
    for i in range(8): both(lambda R, X, T: f"v_sub_f32 v{X+i}, v{X+i}, v{T}")
    both(lambda R, X, T: f"v_mul_f32 v{T+2}, 0x{f32hex(QSCALE)}, v{T+2}")
    for i in range(4): both(lambda R, X, T: cvt(R + i, X + 2 * i, X + 2 * i + 1))
    unpack()
    for i in range(8): both(lambda R, X, T: f"v_mul_f32 v{X+i}, v{X+i}, v{T+2}")
    for i in range(4): both(lambda R, X, T: cvt(R + i, X + 2 * i, X + 2 * i + 1))

def srd(d, lo, off, size):
    r = [f"s_add_u32 s{d}, s{lo}, s{off}", f"s_addc_u32 s{d+1}, s{lo+1}, 0"] if off is not None else [f"s_mov_b32 s{d}, s{lo}", f"s_mov_b32 s{d+1}, s{lo+1}"]
    return r + [size.replace("@", f"s{d+2}"), f"s_mov_b32 s{d+3}, 0x20000"]

def back1k(d): return [f"s_sub_u32 s{d}, s{d}, 1024", f"s_subb_u32 s{d+1}, s{d+1}, 0"]

class P1:
    def __init__(s, a, N, opt):
        s.a, s.N, s.opt = a, N, opt
        OPT.clear(); OPT.update(opt)
        s.sch = Sched(a)
        s.pol = opt.get("kvpol", "sc1")
    def stamp(s, i, pst=False):
        if s.opt.get("stamp") and bool(s.opt.get("pst")) == pst: s.a(f"s_memtime s[{sTm + 2 + 2 * i}:{sTm + 3 + 2 * i}]")
    def stage(s, par, swap=False, first=False, valu=[], stores={}, dma=1, nxt=True, seed=False, carry=False, xfv={}, xfx={}, scal=[]):
        sch = s.sch
        sch.reset([])
        if seed: sch.vmq = canon(par) + canon(par ^ 1)
        mf = []
        for o in range(8):
            for n in range(8):
                for ks in range(2):
                    A, B = (XF(par, n, ks), WF(o, ks)) if swap else (WF(o, ks), XF(par, n, ks))
                    c = "0" if first and ks == 0 else accs(o, n)
                    mf.append((f"v_mfma_f32_16x16x32_bf16 {accs(o, n)}, {A}, {B}, {c}", ("W", par, o, ks)))
        fv, fx = vm_plan(par, dma == 2) if dma else ({}, {})
        for g, l in stores.items(): fv.setdefault(g, []).append(l)
        for g, l in xfv.items(): fv.setdefault(g, []).extend(l)
        for g, l in xfx.items(): fx.setdefault(g, []).extend(l)
        reads = {}
        for o in range(8 if nxt else 6):
            pp, oo = (par, o + 2) if o < 6 else (par ^ 1, o - 6)
            for k, r in enumerate(rdW(pp, oo)): reads[16 * o + 2 + 2 * k] = [r]
            if oo % 4 == 0:
                fx.setdefault(16 * o - 1, []).insert(0, "s_waitcnt lgkmcnt(0)")
                fx.setdefault(16 * o, []).insert(0, f"s_waitcnt vmcnt(@VT:P{oo >> 1}{pp}@)")
                fx.setdefault(16 * o + 4, []).insert(0, f"s_waitcnt vmcnt(@VT:P{(oo >> 1) + 1}{pp}@)")
        if nxt:
            fx.setdefault(58, []).append(f"s_waitcnt vmcnt(@VT:X{par ^ 1}@)")
            fx.setdefault(59, []).append("s_barrier")
            for k, r in enumerate(rdX(par ^ 1)): reads[61 + 2 * k if k < 12 else 99 + 4 * (k - 12)] = [r]
            fx.setdefault(123, []).append("s_waitcnt lgkmcnt(0)")
            fx.setdefault(124, []).append("s_barrier")
        if s.opt.get("stamp") and nxt:
            fx.setdefault(1, []).append("s_memtime s[52:53]")
            fv.setdefault(119, []).append(f"v_cmp_eq_u32 vcc, s{sStg}, v1")
            fv.setdefault(124, []).append(f"v_mov_b32 v7, s52")
            fv.setdefault(126, []).append(f"v_cndmask_b32 v6, v6, v7, vcc")
        r = sch.phase(mf, reads, valu, scal=list(scal) + [(100, f"s_add_u32 s{sStg}, s{sStg}, 1")], fixed=fx, fixedv=fv, carry=carry)
        if s.opt.get("verbose"): print("stage over", sch.over, "left", len(r or []))
        return r
    def prologue(s):
        a, N = s.a, s.N
        a(f"""
        s_load_dwordx16 s[40:55], s[0:1], 0
        s_load_dwordx8 s[56:63], s[0:1], 64
        s_load_dwordx2 s[64:65], s[0:1], 96
        v_lshrrev_b32 v1, 6, v0
        s_and_b32 s{sH}, s2, 15
        v_readfirstlane_b32 s{sW}, v1
        v_and_b32 v1, 63, v0
        s_lshr_b32 s{sB}, s2, 4
        v_lshlrev_b32 v{vSt}, 4, v1
        s_mul_i32 s{sWreg}, s{sW}, {REG}
        s_lshl_b32 s{t0}, s{sB}, 4
        s_add_u32 s{t0}, s{t0}, s{sH}
        s_lshl_b32 s{t0}, s{t0}, 2
        s_add_u32 s{t0}, s{t0}, s{sW}
        s_mul_i32 s{t1}, s{t0}, {2*896}
        s_lshl_b32 s{t3}, s{t0}, 12
        v_cmp_gt_u32 vcc, 56, v1
        v_mov_b32 v{vT}, 0x7fffff00
        ; X voffs
        v_lshrrev_b32 v{vT+1}, 3, v1
        s_lshl_b32 s{t2}, s{sW}, 5
        v_cndmask_b32 v22, v{vT}, v{vSt}, vcc
        v_add_u32 v{vT+1}, s{t2}, v{vT+1}
        v_lshlrev_b32 v{vT+1}, 11, v{vT+1}
        v_lshrrev_b32 v{vT+2}, 4, v1         ; g
        v_and_b32 v{vT+3}, 7, v1
        v_xor_b32 v{vT+3}, v{vT+3}, v{vT+2}
        v_lshl_add_u32 v{vXo}, v{vT+3}, 4, v{vT+1}
        v_xor_b32 v{vT+3}, 4, v{vT+3}
        v_lshl_add_u32 v{vXo+1}, v{vT+3}, 4, v{vT+1}
        v_add_u32 v{vXo+2}, {2*(16384-1024)}, v{vXo}
        v_add_u32 v{vXo+1}, {16384-1024}, v{vXo+1}
        v_add_u32 v{vXo+3}, {2*(16384-1024)}, v{vXo+1}
        ; W voffs
        v_lshrrev_b32 v{vT+4}, 5, v1
        v_lshlrev_b32 v{vT+4}, 1, v{vT+4}
        v_and_b32 v{vT+3}, 3, v1
        v_xor_b32 v{vT+4}, v{vT+4}, v{vT+3}
        v_lshlrev_b32 v{vWG}, 4, v{vT+4}     ; chunk*16
        v_lshrrev_b32 v{vT+1}, 2, v1
        v_lshl_add_u32 v{vWA}, v{vT+1}, 13, v{vWG}
        """)
        a(f"v_add_u32 v{vWA+1}, {16*8192-2048}, v{vWA}")
        pre, post, post2 = s.pf_first()
        a(pre)
        a(f"""
        s_lshl_b32 s{sXs}, s{sB}, 18
        s_mov_b32 s{sWa}, 0
        s_mov_b32 s{sWb}, 0
        s_lshl_b32 s{t0}, s{sH}, 9
        s_and_b32 s{t2}, s{sW}, 1
        s_lshl_b32 s{t2}, s{t2}, 8
        s_add_u32 s{t0}, s{t0}, s{t2}
        s_waitcnt lgkmcnt(0)
        """)
        s.stamp(0, True)
        a(post)
        a.ext(srd(STMP, pX, None, f"s_mov_b32 @, {XN_BYTES}"))
        a.ext(srd(SX, pC, None, f"s_mov_b32 @, {2048*2048}"))
        a(f"buffer_load_dwordx4 v[32:35], v22, {sr(STMP,4)}, s{t1} offen")
        a(f"buffer_load_dwordx4 v[36:39], v22, {sr(STMP,4)}, s{t1} offen offset:896")
        a(post2); s.npf = 1
        a(f"s_cmp_lt_u32 s{sW}, 2\ns_cselect_b32 s52, s{pWUK}, s{pWUV}\ns_cselect_b32 s53, s{pWUK+1}, s{pWUV+1}")
        for p in range(4):
            a.ext(srd(SW[p], 52, t0, f"s_sub_u32 @, {1024*8192 + (p & 1) * 1024}, s{t0}"))
            if p & 1: a.ext(back1k(SW[p]))
            if p < 3: a(f"s_add_u32 s{t0}, s{t0}, 64")
        if s.opt.get("now"):
            for p in range(4): a(f"s_mov_b32 s{SW[p]+2}, 0")
        if s.opt.get("nox"): a(f"s_mov_b32 s{SX+2}, 0")
        for par in range(2):
            fv, fx = vm_plan(par)
            for g in range(128):
                for t in fx.get(g, []): a(t)
                if fx.get(g) and "m0" in fx[g][-1]: a("s_nop 0")
                for t in fv.get(g, []): a(t)
        s.stamp(1, True)
        a.ext(srd(SWS, pWS, None, f"s_mov_b32 @, {WS_BYTES}"))
        a.ext(srd(SDBG, pDBG, None, f"s_mov_b32 @, 0"))
        s.pf_setup()
        a(f"""
        s_lshl_b32 s{t0}, s{sH}, 21
        s_lshl_b32 s{t1}, s{sB}, 17
        s_add_u32 s{t0}, s{t0}, s{t1}
        s_add_u32 s{t0}, s{t0}, {KV_OFF}
        s_lshl_b32 s{t1}, s{sW}, 12          ; K: 4w KB
        s_lshl_b32 s{t2}, s{sW}, 13          ; V: 16K + 8(w-2) KB
        s_cmp_lt_u32 s{sW}, 2
        s_cselect_b32 s{t1}, s{t1}, s{t2}
        s_cselect_b32 s{t2}, 2, 1
        s_lshl_b32 s{t2}, s{t2}, 12
        s_add_u32 s{sSt}, s{t0}, s{t1}
        s_add_u32 s{sSt+4}, s{sSt}, s{t2}
        """)
        for m in range(1, 4):
            a(f"s_add_u32 s{sSt+m}, s{sSt}, {m*32768}\ns_add_u32 s{sSt+4+m}, s{sSt+4}, {m*32768}")
        a(f"""
        v_and_b32 v{vT}, 15, v1
        v_lshrrev_b32 v{vT+1}, 1, v{vT}
        v_xor_b32 v{vT+1}, v{vT+1}, v{vT+2}
        v_lshlrev_b32 v{vT}, 7, v{vT}
        v_add_u32 v{vT}, 32768, v{vT}
        v_lshl_add_u32 v{vXr}, v{vT+1}, 4, v{vT}
        v_xor_b32 v{vT+1}, 4, v{vT+1}
        v_lshl_add_u32 v{vXr+1}, v{vT+1}, 4, v{vT}
        v_add_u32 v{vXr+2}, {2*REG}, v{vXr}
        v_add_u32 v{vXr+3}, {2*REG}, v{vXr+1}
        v_bfe_u32 v{vT}, v1, 2, 2
        v_and_b32 v{vT+1}, 1, v{vT+2}
        v_lshl_add_u32 v{vT}, v{vT+1}, 3, v{vT}
        v_lshlrev_b32 v{vT}, 6, v{vT}
        v_lshl_add_u32 v{vT}, v{vT+3}, 3, v{vT}
        v_lshrrev_b32 v{vT+4}, 5, v1
        v_lshl_add_u32 v{vT}, v{vT+4}, 11, v{vT}
        v_add_u32 v{vT}, s{sWreg}, v{vT}
        v_lshl_add_u32 v{vWr}, v{vT+1}, 5, v{vT}
        v_xor_b32 v{vWr+1}, 32, v{vWr}
        s_mov_b32 s{sStg}, 0
        v_lshrrev_b32 v{vT+1}, 2, v1
        v_mul_u32_u24 v{vT+1}, 3584, v{vT+1}
        v_add_u32 v{vWG}, v{vT+1}, v{vWG}
        v_add_u32 v{vWG+1}, {16*3584-2048}, v{vWG}
        s_lshl_b32 s{t0}, 1, s{sH}
        v_mov_b32 v{vFd}, s{t0}
        s_lshl_b32 s{t0}, s{sB}, 2
        v_lshlrev_b32 v{vFo}, 10, v0
        v_add_u32 v{vFo}, s{t0}, v{vFo}
        s_and_b32 s{sFlagStg}, s{sB}, 7
        s_add_u32 s{sFlagStg}, s{sFlagStg}, 2
        """)
        for r in range(4): a(f"v_accvgpr_write_b32 a{192+r}, 0")
        a("s_nop 1")
        Z = lambda d: a(f"v_mfma_f32_32x32x16_bf16 {d}, a[192:195], a[192:195], 0")
        for r in range(64, 256, 16): Z(vr(r, 16))
        Z(ar(0, 16)); Z(ar(16, 16))
        n2 = len(canon(0)) + len(canon(1)) + s.npf
        a(f"s_waitcnt vmcnt({n2})")
        s.stamp(2, True)
        ln2(a, 32, 40, vT, t0)
        s.stamp(3, True)
        a(f"buffer_store_dwordx4 v[32:35], v22, {sr(SWS,4)}, s{t3} offen sc1")
        a(f"buffer_store_dwordx4 v[36:39], v22, {sr(SWS,4)}, s{t3} offen offset:2048 sc1")
        Z(vr(48, 16))
        a(f"v_and_b32 v{vPoll+1}, 15, v1\nv_lshlrev_b32 v{vPoll+1}, 2, v{vPoll+1}")
        a(f"s_waitcnt vmcnt({2 + n2 - s.npf - 1 - max(i for i, x in enumerate(canon(0)) if x == 'P10')})\ns_barrier")
        s.stamp(0)
        for r in rdW(0, 0) + rdX(0) + rdW(0, 1): a(r[0])
        Z(vr(32, 16))
        a("s_waitcnt lgkmcnt(0)\ns_barrier\ns_nop 7")
    def pf_first(s):
        pre = f"""
        s_cmp_lt_u32 s{sW}, 2
        s_cselect_b32 s{t0}, 2, 1
        s_cselect_b32 s{t2}, 3, 1
        s_cselect_b32 s3, 13, 11
        v_lshrrev_b32 v{vT+5}, s{t0}, v1
        v_and_b32 v{vT+6}, s{t2}, v1
        v_lshlrev_b32 v{vT+6}, 7, v{vT+6}
        v_lshlrev_b32 v{vPf}, s3, v{vT+5}
        v_add_u32 v{vPf}, v{vPf}, v{vT+6}
        s_lshl_b32 s{SPF+2}, s{t0}, 22
        s_mov_b32 s{SPF+3}, 0x20000
        s_lshl_b32 s{sPf}, s{sB}, 16           ; W: 8b rows
        s_lshl_b32 s{t0}, s{sH}, 9
        s_add_u32 s{sPf}, s{sPf}, s{t0}
        s_lshl_b32 s{t0}, s{sB}, 1
        s_lshr_b32 s{t2}, s{sH}, 3
        s_add_u32 s{t0}, s{t0}, s{t2}
        s_lshl_b32 s{t0}, s{t0}, 1
        s_add_u32 s{t0}, s{t0}, s{sW}
        s_sub_u32 s{t0}, s{t0}, 2
        s_lshl_b32 s{t0}, s{t0}, 16
        s_movk_i32 s{t2}, 256
        s_cmp_lt_u32 s{sW}, 2
        s_cselect_b32 s{sPf}, s{sPf}, s{t0}
        s_cselect_b32 s{sPfStg}, {128*8192}, s{t2}
        s_cselect_b32 s{t0}, 32, 64
        v_cmp_gt_u32 s[{STMP}:{STMP+1}], s{t0}, v1
        s_add_u32 s{sPfStg}, s{sPfStg}, s{sPf}
        s_nop 0
        v_cndmask_b32 v{vPf}, v{vT}, v{vPf}, s[{STMP}:{STMP+1}]
        """
        post = f"""
        s_cmp_lt_u32 s{sW}, 2
        s_cselect_b32 s{SPF}, s{pWUK}, s{pC}
        s_cselect_b32 s{SPF+1}, s{pWUK+1}, s{pC+1}
        s_cmp_eq_u32 s{sW}, 1
        s_cselect_b32 s{SPF}, s{pWUV}, s{SPF}
        s_cselect_b32 s{SPF+1}, s{pWUV+1}, s{SPF+1}
        buffer_load_dword v{vT+7}, v{vPf}, {sr(SPF, 4)}, s{sPf} offen
        """
        post2 = f"buffer_load_dword v{vT+7}, v{vPf}, {sr(SPF, 4)}, s{sPfStg} offen"
        return pre, post, post2
    def pf_setup(s):
        a = s.a
        a(f"""
        s_and_b32 s{t0}, s{sB}, 7
        s_sub_u32 s{sPfStg}, s{t0}, 1
        s_max_i32 s{sPfStg}, s{sPfStg}, 0
        s_lshl_b32 s{t0}, s{t0}, 1
        s_lshr_b32 s{t1}, s{sB}, 3
        s_add_u32 s{t0}, s{t0}, s{t1}
        s_lshl_b32 s{t0}, s{t0}, 4
        s_add_u32 s{t0}, s{t0}, s{sH}
        s_lshl_b32 s{t0}, s{t0}, 2
        s_add_u32 s{t0}, s{t0}, s{sW}          ; u
        s_bitcmp1_b32 s{t0}, 0
        s_cselect_b32 s{SPF}, s{pWUV}, s{pWUK}
        s_cselect_b32 s{SPF+1}, s{pWUV+1}, s{pWUK+1}
        s_lshr_b32 s{sPf}, s{t0}, 1            ; (u-128)/2 + 64
        s_cmp_lt_u32 s{t0}, 128
        s_cselect_b32 s{SPF}, s{pC}, s{SPF}
        s_cselect_b32 s{SPF+1}, s{pC+1}, s{SPF+1}
        s_cselect_b32 s{sPf}, s{t0}, s{sPf}
        """)
        st = 512
        for p, n in ((pWQ, 112), (pWG, 49), (pWU, 49), (pWO, 112), (pWD, 49)):
            a(f"s_sub_u32 s{t1}, s{t0}, {st}\ns_cselect_b32 s{SPF}, s{SPF}, s{p}\ns_cselect_b32 s{SPF+1}, s{SPF+1}, s{p+1}\ns_cselect_b32 s{sPf}, s{sPf}, s{t1}")
            st += n
        a(f"""
        s_lshl_b32 s{sPf}, s{sPf}, 15
        s_add_u32 s{sPfz}, s{sPf}, 32768
        s_cmp_lt_u32 s{t0}, {st}
        s_cselect_b32 s{sPfz}, s{sPfz}, 0
        v_lshlrev_b32 v{vPf}, 9, v1
        """)
        if s.opt.get("nopf1"): a(f"s_mov_b32 s{sPfz}, 0")
    def lncheck(s, tag):
        a, N = s.a, s.N
        a(f"""
        v_cmp_ne_u32 vcc, 0xffff, v{vPoll}
        s_mov_b32 s{SX}, s{pWS}
        s_mov_b32 s{SX+1}, s{pWS+1}
        s_lshl_b32 s{sXs}, s{sB}, 18
        s_cbranch_vccz {N}_go{tag}
        s_mov_b32 s{t1}, {SPINMAX}
        s_mov_b32 s{SDBG+2}, 256
        """)
        a.label(f"{N}_spin{tag}")
        a(f"""
        s_sub_u32 s{t1}, s{t1}, 1
        s_cbranch_scc1 {N}_go{tag}
        {POLL}
        s_waitcnt vmcnt(0)
        v_cmp_ne_u32 vcc, 0xffff, v{vPoll}
        s_cbranch_vccnz {N}_spin{tag}
        """)
        a.label(f"{N}_go{tag}")
    def switch(s):
        J = lambda l: "\n".join(l)
        r = [f"s_lshl_b32 s{t0}, s{sH}, 8", f"s_lshl_b32 s{t1}, s{sW}, 6", f"s_add_u32 s{t0}, s{t0}, s{t1}",
             f"s_sub_u32 s{t1}, {448*3584}, s{t0}", f"s_add_u32 s{t2}, s{t1}, 1024",
             J([f"s_cmp_lt_u32 s{sH}, 14", f"s_cselect_b32 s{SW[0]+2}, s{t1}, 0", f"s_cselect_b32 s{SW[1]+2}, s{t2}, 0"]),
             J(srd(SW[0], pWG, t0, "")[:2]), J(srd(SW[1], pWU, t0, "")[:2]), J(back1k(SW[1])), f"s_mov_b32 s{sWa}, 0",
             f"s_lshl_b32 s{t0}, s{t0}, 1", J(srd(SW[2], pWQ, t0, "")[:2]), f"s_sub_u32 s{SW[2]+2}, {448*8192}, s{t0}",
             f"s_add_u32 s{t0}, s{t0}, 64", J(srd(SW[3], pWQ, t0, "")[:2]), J(back1k(SW[3])), f"s_sub_u32 s{SW[3]+2}, {448*8192+1024}, s{t0}",
             f"s_mov_b32 s{sWb}, 0"]
        return [(3, x) for x in r]
    def epiK(s):
        v = []
        for n in range(8): v += packA(acc(0, n), acc(1, n), 21 + 2 * n)
        for p in (1, 2):
            for n in range(8):
                v += packA(acc(2 * p, n), acc(2 * p + 1, n), 32 * p + 21 + 2 * n) + toStash(STASH(p - 1, n & 1, n >> 1), acc(2 * p, n), 0)
        st1 = [store(vr(acc(0, n), 4), n & 1, n >> 1, 0, SWS, s.pol) for n in range(8)]
        v2 = []
        for n in range(8):
            T = vT + 4 * (n & 1)
            v2 += fromAcc(T, n, 3) + packA(acc(6, n), T, 3)
        st2 = [store(vr(acc(6, n), 4), n & 1, n >> 1, 3072, SWS, s.pol) for n in range(8)]
        return v, st1, v2, st2
    def epiV(s):
        v = []
        for o in (0, 3, 1, 2, 4, 5, 6):
            for m in range(4):
                g = 16 * o + 4 * m + 8
                A, B = acc(o, 2 * m), acc(o, 2 * m + 1)
                if o in (0, 3): v += [x + ("hi",) for x in packB(A, B, g)]
                elif o == 4: v += packB(A, B, g)
                else: v += packA(A, B, g) + toStash(STASH((o & 3) - 1, o >> 2, m), A, g)
        st1 = [store(vr(acc(o, 2 * m + 1), 4), 0, m, o * 1024, SWS, s.pol) for o in (0, 3) for m in range(4)]
        v2 = []
        for m in range(4):
            v2 += fromAcc(vT, 2 * m, 3) + fromAcc(vT + 4, 2 * m + 1, 3) + packTo(acc(6, 4 + m), vT, vT + 4, 3)
        st2 = [store(vr(acc(4, 2 * m + 1), 4), 1, m, 0, SWS, s.pol) for m in range(4)] + \
              [store(vr(acc(6, 4 + m), 4), 1, m, 3072, SWS, s.pol) for m in range(4)]
        return v, st1, v2, st2
    def ffn(s, n, g, srdH):
        G = [acc(0, n) + r for r in range(4)] + [acc(1, n) + r for r in range(4)]
        U = [acc(2, n) + r for r in range(4)] + [acc(3, n) + r for r in range(4)]
        v = [(g, f"v_mul_f32 v{u}, v{u}, v{x}", 1) for u, x in zip(U, G)]
        v += [(g, f"v_mul_f32 v{x}, s{t3}, v{x}", 1) for x in G]
        v += [(g, f"v_exp_f32 v{x}, v{x}", 2) for x in G]
        v += [(g, f"v_add_f32 v{x}, 1.0, v{x}", 1) for x in G]
        v += [(g, f"v_rcp_f32 v{x}, v{x}", 2) for x in G]
        v += [(g, f"v_mul_f32 v{u}, v{u}, v{x}", 1) for u, x in zip(U, G)]
        v += packA(acc(2, n), acc(3, n), g)
        v += [(g, f"s_add_u32 s{t2}, s{t0}, {n * 56 * 1024}\nbuffer_store_dwordx4 {vr(acc(2, n), 4)}, v{vSt}, {sr(srdH, 4)}, s{t2} offen {s.pol}", 2)]
        return v
    def body(s):
        a, N = s.a, s.N
        s.prologue()
        a(f"s_cmp_lt_u32 s{sW}, 2\ns_cbranch_scc1 {N}_N0")
        SG = s.opt.get("SG", [42, 48, 54, 66, 78, 84, 90, 94])
        cx = {25: [f"s_cmp_eq_u32 s{sStg}, s{sFlagStg}"], 26: [f"s_cselect_b32 s{SDBG+2}, 256, 0"],
              78: [f"s_cmp_eq_u32 s{sStg}, s{sPfStg}"], 79: [f"s_cselect_b32 s{SPF+2}, s{sPfz}, 0"]}
        cv = {27: [f"buffer_atomic_or v{vFd}, v{vFo}, {sr(SDBG,4)}, 0 offen sc1"], **{85 + 2 * k: [PF(k)] for k in range(4)}}
        for tag, swap in (("V", True), ("N", False)):
            a(".p2align 6")
            a.label(f"{N}_{tag}0")
            s.stage(0, swap, seed=True, xfx={**cx, 28: [f"s_cmp_eq_u32 s{sStg}, 12"], 29: [f"s_cselect_b32 s{SDBG+2}, 256, 0"]}, xfv={**cv, 30: [POLL]})
            s.stage(1, swap, xfx={**cx, 127: [f"s_cmp_lg_u32 s{sStg}, 14"]}, xfv=cv)
            a(f"s_cbranch_scc1 {N}_{tag}0")
            a.label(f"{N}_last{tag}")
            s.lncheck(tag)
            s.stage(0, swap, dma=2, scal=s.switch())
            s.stamp(1)
            v, st1, v2, st2 = s.epiV() if swap else s.epiK()
            left = s.stage(1, swap, dma=2, valu=v, stores=dict(zip(SG, st1)), carry=True)
            s.stage(0, False, dma=2, first=True, valu=left + v2, stores=dict(zip(SG, st2)))
            s.stamp(2)
            if tag == "V": a(f"s_branch {N}_T2")
            a.label(f"{N}_end{tag}")
        a.label(f"{N}_T2")
        cnt = s.opt.get("stcnt", [4, 3, 3, 3, 3]); k = 0
        for i in range(5):
            g = [27, 81, 87, 93, 60, 48, 42, 54][:cnt[i]]
            s.stage((i + 1) & 1, dma=2 if i < 4 else 0, stores={x: stash_store(k + j, s.pol) for j, x in enumerate(g)})
            k += cnt[i]
        assert k == 16
    def paths(s):
        N = s.N
        return [[(N, f"{N}_V0")] + [(f"{N}_{t}0", f"{N}_last{t}")] * 7 + [(f"{N}_go{t}", f"{N}_end{t}"), (f"{N}_T2", f"{N}_last2")] for t in "VN"]

def gen_k1(name="proj_kernel", opt=None):
    opt = opt or {}
    a = Asm(); N = name
    P = P1(a, N, opt)
    a(f".p2align 8\n.globl {N}\n.type {N},@function")
    a.label(N)
    a(f"s_cmp_ge_u32 s2, 256\ns_cbranch_scc1 {N}_done")
    if opt.get("stamp"): a(f"s_memtime s[{sTm}:{sTm+1}]\ns_memrealtime s[{sTm+10}:{sTm+11}]")
    P.body()
    a.label(f"{N}_last2")
    P.stamp(3)
    a(f"""
    s_mul_i32 s{t0}, s{sB}, {8*56}
    s_lshl_b32 s{t1}, s{sH}, 2
    s_add_u32 s{t0}, s{t0}, s{t1}
    s_add_u32 s{t0}, s{t0}, s{sW}
    s_lshl_b32 s{t0}, s{t0}, 10
    s_add_u32 s{t0}, s{t0}, {H_OFF}
    s_lshl_b32 s{t1}, s{sH}, 20
    s_lshl_b32 s{t2}, s{sB}, 16
    s_add_u32 s{t1}, s{t1}, s{t2}
    s_lshl_b32 s{t2}, s{sW}, 11
    s_add_u32 s{t1}, s{t1}, s{t2}
    s_add_u32 s{t1}, s{t1}, {Q_OFF}
    s_mov_b32 s{t3}, 0x{f32hex(-16.0)}
    s_cmp_lt_u32 s{sH}, 14
    s_cselect_b32 s{STMP+2}, s{SWS+2}, 0
    s_mov_b32 s{STMP}, s{pWS}
    s_mov_b32 s{STMP+1}, s{pWS+1}
    """)
    def qst(n, p):
        return [(0, f"s_add_u32 s{t2}, s{t1}, {n * 8192}\nbuffer_store_dwordx4 {vr(acc(4 + 2 * p, n), 4)}, v{vSt}, {sr(SWS, 4)}, s{t2} offen offset:{p * 1024} {P.pol}", 2)]
    v = P.ffn(0, 53, STMP) + P.ffn(1, 55, STMP)
    for n in range(8): v += packA(acc(4, n), acc(5, n), 85 + 2 * n) + qst(n, 0)
    for n in range(2, 4): v += P.ffn(n, 67, STMP)
    for n in range(8):
        T = vT + 4 * (n & 1)
        v += fromAcc(T, n, 200) + packA(acc(6, n), T, 200) + qst(n, 1)
    for n in range(4, 8): v += P.ffn(n, 67, STMP)
    P.stage(0, False, valu=v, dma=0, nxt=False)
    a.label(f"{N}_fin")
    if opt.get("stamp"):
        a(f"""
        s_memtime s[52:53]
        s_lshl_b32 s{t2}, s2, 2
        s_add_u32 s{t2}, s{t2}, s{sW}
        s_lshl_b32 s{t2}, s{t2}, 8
        s_add_u32 s{t2}, s{t2}, {STAMP_OFF + 262144}
        v_subrev_u32 v22, s{sTm}, v6
        v_lshlrev_b32 v23, 2, v1
        buffer_store_dword v22, v23, {sr(SWS,4)}, s{t2} offen
        s_waitcnt vmcnt(0)
        s_memtime s[4:5]
        s_memrealtime s[6:7]
        s_waitcnt lgkmcnt(0)
        s_sub_u32 s{t0}, s4, s{sTm}
        s_sub_u32 s{t1}, s6, s{sTm+10}
        v_mov_b32 v24, s{t0}
        v_mov_b32 v25, s{t1}
        v_mov_b32 v26, s{sTm+10}
        v_mov_b32 v27, s6
        s_lshl_b32 s{t2}, s2, 6
        s_lshl_b32 s{t3}, s{sW}, 4
        s_add_u32 s{t2}, s{t2}, s{t3}
        s_add_u32 s{t2}, s{t2}, {STAMP_OFF}
        v_mov_b32 v28, 0
        s_mov_b64 exec, 1
        buffer_store_dwordx4 v[24:27], v28, {sr(SWS,4)}, s{t2} offen
        """)
        for i in range(4): a(f"s_sub_u32 s{t0}, s{sTm+2+2*i}, s{sTm}\nv_mov_b32 v{4+i}, s{t0}")
        a(f"s_add_u32 s{t2}, s{t2}, 65536\nbuffer_store_dwordx4 v[4:7], v28, {sr(SWS,4)}, s{t2} offen")
        a(f"s_sub_u32 s{t0}, s52, s{sTm}\nv_mov_b32 v8, s{t0}\ns_add_u32 s{t2}, s{t2}, 65536\nbuffer_store_dword v8, v28, {sr(SWS,4)}, s{t2} offen")
    a.label(f"{N}_done")
    a("s_endpgm")
    import trace
    for p in P.paths(): print("trace bad:", trace.check(a.text(), p + [(f"{N}_last2", f"{N}_fin")]))
    return a.text(), kernel_desc(N, 512, 102, 256), f"; @launch kernel={N} grid=(256,1,1) block=(256,1,1) lds=163840"
```

```python
from asmlib import *
from layout import *
from k0 import f32hex

SLOT = 32768
RING = 5 * SLOT
THR = 2.0 ** 16
NEG = -1.0e30
vDma, vDma2, vL16, vRd = 2, 3, 4, 5
vWo = 6
vTl, vTc = 10, 14
vT0, vT1 = 18, 19
vL = 20
vLs = 24
vT2, vT3 = 26, 27
vPm = 28
vE = 32
def NEGM(qs): return 40 + 4 * qs
def CM(kt): return 48 + 4 * kt
def MB(k, kt): return 56 + 8 * k + 4 * kt
def P(p, qs): return 72 + 8 * p + 4 * qs
def S(p, kt, qs): return 88 + 16 * p + 8 * kt + 4 * qs
vOut = 120
def OB(dk, qs): return 128 + (dk * 2 + qs) * 8
def O(dt, qs): return OB(dt >> 1, qs) + 4 * (dt & 1)
def Q(qs, dk): return ar((qs * 8 + dk) * 4, 4)
def F(f, half=None):
    b = 64 + 4 * (f % 16)
    return ar(b, 4) if half is None else ar(b + 2 * half, 2)
def PP(dk, qs): return 128 + (dk * 2 + qs) * 4
SWS, SWO, SDBG, SPT = 8, 12, 16, 4
pWS, pWO, pDBG = 20, 22, 24
sW, sW4K, sWrW, sWrap = 26, 27, 28, 29
sSrc, sSrcEnd, sSrcNext, sRd = 30, 31, 32, 33
sCnt, sSeg, sComb, sRet = 34, 35, 36, 37
sHd, sI, sBlk, sN = 38, 39, 40, 41
sThr, sPub, sPart, sSeen = 42, 43, 44, 45
sWoS, sSt0, sSt1, sBit = 46, 47, 48, 49
t0, t1, t2, t3 = 50, 51, 52, 53
sMask = 54
sTm = 60

def rdK(f): return (f"ds_read_b128 {F(f)}, v{vRd} offset:{16384 + f * 1024}", f)
def rdV(f): return (f"ds_read_b128 {F(f)}, v{vRd} offset:{(f - 16) * 1024}", f)
def rdKV(f): return rdK(f) if f < 16 else rdV(f)
def rdW(f):
    mt, dk = (f >> 3) & 3, f & 7
    return [(f"ds_read_b64_tr_b16 {F(f, t)}, v{vTc + mt} offset:{(32 * dk + 16 * t) * 128}", 100 + f) for t in range(2)]
def mm(d, A, B, c): return f"v_mfma_f32_16x16x32_bf16 {vr(d,4)}, {A}, {B}, {c}"
def qk(pn, qss, cinit):
    m = []
    for kt in range(2):
        for qs in qss:
            for dk in range(8):
                d = S(pn, kt, qs)
                m.append((mm(d, F(kt * 8 + dk), Q(qs, dk), cinit(kt, qs) if dk == 0 else vr(d, 4)), kt * 8 + dk))
    return m
def pv(p, qss):
    return [(mm(O(dt, qs), F(16 + dt), vr(P(p, qs), 4), vr(O(dt, qs), 4)), 16 + dt) for dt in range(16) for qs in qss]
def expw(p, qs, g0=0):
    src = [S(p, kt, qs) + r for kt in range(2) for r in range(4)]
    ls = vLs + qs
    v = []
    for k in range(8):
        v.append((g0, f"v_exp_f32 v{vE + k}, v{src[k]}", 2))
        if k == 1: v.append((g0, f"v_add_f32 v{ls}, v{vE}, v{vE + 1}", 1))
        elif k > 1: v.append((g0, f"v_add_f32 v{ls}, v{ls}, v{vE + k}", 1))
    for r in range(4):
        v.append((g0, f"v_cvt_pk_bf16_f32 v{P(p, qs) + r}, v{vE + 2 * r}, v{vE + 2 * r + 1}", 1))
    return v
def check_ops(): return [(0, f"v_max_f32 v{vT0}, v{vLs}, v{vLs + 1}", 1), (0, f"v_cmp_lt_f32 vcc, s{sThr}, v{vT0}", 1)]
def lacc(qss): return [(0, f"v_add_f32 v{vL + qs}, v{vL + qs}, v{vLs + qs}", 1) for qs in qss]
def cm_ops(qs, k): return [(0, f"v_add_f32 v{CM(kt) + r}, v{NEGM(qs)}, v{MB(k, kt) + r}", 1) for kt in range(2) for r in range(4)]
def dma(h, wo):
    if wo:
        return [f"buffer_load_dwordx4 v{vWo + j}, {sr(SWO, 4)}, s{sWoS if h == 0 else t3} offen offset:{j * 1024} lds" for j in range(4)]
    return [f"buffer_load_dwordx4 v{vDma if h == 0 else vDma2}, {sr(SWS, 4)}, s{sSrc} offen offset:{j * 1024} lds" for j in range(4)]
def m0set(h, wo):
    r = [f"s_mov_b32 m0, s{sWrW}"] if h == 0 else [f"s_add_u32 m0, s{sWrW}, 16384"]
    if wo and h == 1: r.append(f"s_add_u32 s{t3}, s{sWoS}, {128 * 896}")
    return r
def adv_wr(wo):
    r = [f"s_add_u32 s{sWrW}, s{sWrW}, {SLOT}", f"s_cmp_eq_u32 s{sWrW}, s{sWrap}", f"s_cselect_b32 s{sWrW}, s{sW4K}, s{sWrW}"]
    if wo: r += [f"s_add_u32 s{sWoS}, s{sWoS}, 128", f"s_cmp_eq_u32 s{sWoS}, 896", f"s_cselect_b32 s{SWO + 2}, 0, s{SWO + 2}"]
    else: r += [f"s_add_u32 s{sSrc}, s{sSrc}, {SLOT}", f"s_cmp_eq_u32 s{sSrc}, s{sSrcEnd}", f"s_cselect_b32 s{sSrc}, s{sSrcNext}, s{sSrc}"]
    return r
def adv_rd(): return [f"s_add_u32 s{sRd}, s{sRd}, {SLOT}", f"s_cmp_eq_u32 s{sRd}, {RING}", f"s_cselect_b32 s{sRd}, 0, s{sRd}"]
UPD = f"v_add_u32 v{vRd}, s{sRd}, v{vL16}"
UPDW = [f"v_add_u32 v{vTc + k}, s{sRd}, v{vTl + k}" for k in range(4)]
A_ENTRY = list(range(10))
B_ENTRY = list(range(16, 26))

def gen_k2(name="attn_kernel", opt=None):
    opt = opt or {}
    Y0 = opt.get("Y0", 30)
    a = Asm(); sch = Sched(a)
    N = name
    def stamp(i):
        if opt.get("stamp"): a(f"s_memtime s[{sTm + 8 + 2 * i}:{sTm + 9 + 2 * i}]")
    sites = {0: [], 1: []}
    def negm_c(kt, qs): return vr(NEGM(qs), 4)
    def masked_c(mq): return lambda kt, qs: vr(CM(kt), 4) if qs == mq else vr(NEGM(qs), 4)
    def branch_check(p, tag):
        k = len(sites[p]); sites[p].append(tag)
        a(f"s_cbranch_vccnz {N}_rare{p}")
        a.label(f"{N}_ret_{tag}")
        return k
    def phaseA(p, tag, cinit=negm_c, half=False, expq=1, wo=False, extra=[]):
        sch.reset(A_ENTRY)
        mf = qk(p ^ 1, [1] if half else [0, 1], cinit)
        st = 1 if half else 2
        reads = {st * k: [rdKV(10 + k)] for k in range(16)}
        valu = (expw(p, expq) if expq is not None else []) + check_ops() + extra
        dg = [1, 4, 7, 10] if half else [21, 23, 25, 27]
        k = len(sites[p])
        sch.phase(mf, reads, valu, scal=[(0, f"s_mov_b32 s{sRet}, {k}")] + [(dg[3], t) for t in adv_wr(wo)],
                  fixed={dg[0] - 1: m0set(1, wo)}, fixedv={g: [d] for g, d in zip(dg, dma(1, wo))})
        branch_check(p, tag)
    def phaseB(p, half=False, accq=(0, 1), expq=0, wo=False, extra=[], nxt="K", vm=16, post=[]):
        sch.reset(B_ENTRY)
        mf = pv(p, [1] if half else [0, 1])
        st = 1 if half else 2
        reads = {st * k: [rdV(26 + k)] for k in range(6)}
        gb = 5 * st + 1 if not half else 6
        for k in range(10):
            g = st * (6 + k)
            if nxt == "K": reads[g] = [rdK(k)]
            elif nxt == "V": reads[g] = [(rdV(16 + k)[0], 216 + k)]
            elif nxt == "W": reads[g] = rdW(k)
        valu = lacc(accq) + (expw(p ^ 1, expq, 3 if expq == 1 else 0) if expq is not None else []) + extra
        dg = [8, 10, 12, 14] if half else [13, 17, 21, 25]
        fv = {g: [d] for g, d in zip(dg, dma(0, wo))}
        fv[gb] = UPDW if nxt == "W" else [UPD]
        fx = {gb: [f"s_waitcnt vmcnt({vm})", "s_barrier"], dg[0] - 1: m0set(0, wo)}
        for k, t in enumerate(adv_rd()): fx[2 * k] = [t]
        sch.phase(mf, reads, valu, scal=[(26, t) for t in post], fixed=fx, fixedv=fv)

    a(f".p2align 8\n.globl {N}\n.type {N},@function")
    a.label(N)
    a(f"s_cmp_ge_u32 s2, 256\ns_cbranch_scc1 {N}_done")
    if opt.get("stamp"): a(f"s_memtime s[{sTm}:{sTm+1}]\ns_memrealtime s[{sTm+2}:{sTm+3}]")
    a(f"""
    s_load_dwordx2 s[{pWS}:{pWS+1}], s[0:1], 96
    s_load_dwordx2 s[{pWO}:{pWO+1}], s[0:1], 40
    s_load_dwordx2 s[{pDBG}:{pDBG+1}], s[0:1], 88
    v_lshrrev_b32 v1, 6, v0
    s_and_b32 s{sHd}, s2, 15
    v_readfirstlane_b32 s{sW}, v1
    v_and_b32 v1, 63, v0
    s_bfe_u32 s{sI}, s2, 0x30004
    s_lshl_b32 s{t0}, s{sI}, 2
    s_sub_u32 s{t1}, {Y0}, s{t0}
    s_cmp_eq_u32 s{sI}, 7
    s_cselect_b32 s{t1}, 0, s{t1}          ; y
    s_cselect_b32 s{t2}, 0, 1              ; split?
    s_sub_u32 s{sBlk}, 15, s{sI}
    s_lshl_b32 s{sSrcNext}, s{sHd}, 21
    s_add_u32 s{sSrcNext}, s{sSrcNext}, {KV_OFF - 16384}   ; slot(-1)
    s_lshl_b32 s{t3}, s{t1}, 15
    s_add_u32 s{t3}, s{t3}, s{sSrcNext}    ; slot(y-1)
    s_mov_b32 s{sSrcEnd}, -1
    s_cmp_ge_u32 s2, 128
    s_cbranch_scc1 {N}_typeA
    s_mov_b32 s{sComb}, 0
    s_mov_b32 s{sSeg}, s{t2}
    s_mov_b32 s{sSrc}, s{sSrcNext}
    s_mov_b32 s{sN}, s{t1}
    s_add_u32 s{sSrcEnd}, s{t3}, {SLOT}
    s_cmp_eq_u32 s{sI}, 7
    s_cselect_b32 s{sBlk}, 7, s{sBlk}
    s_cselect_b32 s{sN}, 32, s{sN}
    s_cselect_b32 s{sSrcEnd}, -1, s{sSrcEnd}
    s_branch {N}_typed
    """)
    a.label(f"{N}_typeA")
    a(f"""
    s_mov_b32 s{sComb}, s{t2}
    s_mov_b32 s{sSeg}, 0
    s_mov_b32 s{sSrc}, s{t3}
    s_sub_u32 s{sN}, 64, s{t0}
    s_sub_u32 s{sN}, s{sN}, s{t1}
    """)
    a.label(f"{N}_typed")
    a(f"""
    s_lshl_b32 s{sW4K}, s{sW}, 12
    v_lshlrev_b32 v{vL16}, 4, v1
    s_mov_b32 s{sWrW}, s{sW4K}
    s_add_u32 s{sWrap}, s{sW4K}, {RING}
    v_add_u32 v{vDma}, s{sW4K}, v{vL16}
    v_add_u32 v{vDma2}, 16384, v{vDma}
    s_waitcnt lgkmcnt(0)
    s_mov_b32 s{SWS}, s{pWS}
    s_mov_b32 s{SWS+1}, s{pWS+1}
    s_mov_b32 s{SWS+2}, {WS_BYTES}
    s_mov_b32 s{SWS+3}, 0x20000
    """)
    def qload():
        r = [f"s_lshl_b32 s{t0}, s{sHd}, 20", f"s_lshl_b32 s{t1}, s{sBlk}, 16", f"s_add_u32 s{t0}, s{t0}, s{t1}",
             f"s_lshl_b32 s{t1}, s{sW}, 13", f"s_add_u32 s{t0}, s{t0}, s{t1}", f"s_add_u32 s{t0}, s{t0}, {Q_OFF}"]
        for qs in range(2):
            for hf in range(2):
                if qs or hf: r.append(f"s_add_u32 s{t1}, s{t0}, {qs * 32768 + hf * 4096}")
                for j in range(4):
                    r.append(f"buffer_load_dwordx4 {Q(qs, 4 * hf + j)}, v{vL16}, {sr(SWS,4)}, s{t1 if (qs or hf) else t0} offen offset:{j * 1024}")
        return r
    a.ext(m0set(1, False)); a("s_nop 0"); a.ext(dma(1, False)); a.ext(adv_wr(False))
    a.ext(qload())
    for k in range(2):
        for h in range(2):
            a.ext(m0set(h, False)); a("s_nop 0"); a.ext(dma(h, False))
        a.ext(adv_wr(False))
    a.ext(m0set(0, False)); a("s_nop 0"); a.ext(dma(0, False))
    a(f"""
    s_mul_i32 s{t0}, s{sHd}, {256*896}
    s_add_u32 s{SWO}, s{pWO}, s{t0}
    s_addc_u32 s{SWO+1}, s{pWO+1}, 0
    s_mov_b32 s{SWO+2}, {256*896}
    s_mov_b32 s{SWO+3}, 0x20000
    s_mov_b32 s{SDBG}, s{pDBG}
    s_mov_b32 s{SDBG+1}, s{pDBG+1}
    s_mov_b32 s{SDBG+2}, 256
    s_mov_b32 s{SDBG+3}, 0x20000
    s_mov_b32 s{SPT}, s{pWS}
    s_mov_b32 s{SPT+1}, s{pWS+1}
    s_mov_b32 s{SPT+2}, 0
    s_mov_b32 s{SPT+3}, 0x20000
    s_mov_b32 s{sWoS}, 0
    s_mov_b32 s{sRd}, 0
    s_mov_b32 s{sThr}, 0x{f32hex(opt.get('thr', THR))}
    s_mov_b32 s{sPub}, 0
    s_mov_b32 s{sSeen}, 0
    s_mov_b32 s{sRet}, 0
    s_mov_b32 s{sMask}, 0xffff0000
    s_lshl_b32 s{sBit}, 1, s{sI}
    s_lshl_b32 s{t0}, s{sHd}, 3
    s_add_u32 s{t0}, s{t0}, s{sI}
    s_lshl_b32 s{t0}, s{t0}, 2
    s_add_u32 s{t0}, s{t0}, s{sW}
    s_mul_i32 s{sPart}, s{t0}, {17*1024}
    s_add_u32 s{sPart}, s{sPart}, {PART_OFF}
    v_mov_b32 v{vRd}, v{vL16}
    v_lshrrev_b32 v{vT0}, 3, v1
    s_lshl_b32 s{t0}, s{sW}, 5
    v_add_u32 v{vT0}, s{t0}, v{vT0}
    v_mul_u32_u24 v{vT0}, 896, v{vT0}
    v_bfe_u32 v{vT1}, v1, 1, 2
    v_lshrrev_b32 v{vT2}, 4, v1            ; g
    v_xor_b32 v{vT1}, v{vT1}, v{vT2}
    v_lshl_add_u32 v{vT0}, v{vT1}, 5, v{vT0}
    v_and_b32 v{vT1}, 1, v1
    v_lshl_add_u32 v{vWo}, v{vT1}, 4, v{vT0}
    """)
    for j in range(1, 4): a(f"v_add_u32 v{vWo+j}, {6144*j}, v{vWo}")
    a(f"""
    v_lshrrev_b32 v{vT0}, 2, v1
    v_lshlrev_b32 v{vT0}, 7, v{vT0}
    v_and_b32 v{vT1}, 3, v1
    v_lshl_add_u32 v{vT0}, v{vT1}, 3, v{vT0}
    v_bfe_u32 v{vT1}, v1, 3, 2
    """)
    for mt in range(4):
        a(f"v_xor_b32 v{vT3}, {mt}, v{vT1}")
        a(f"v_lshl_add_u32 v{vTl+mt}, v{vT3}, 5, v{vT0}")
    a(f"""
    v_and_b32 v{vT0}, 15, v1
    s_lshl_b32 s{t0}, s{sW}, 4
    v_add_u32 v{vT0}, s{t0}, v{vT0}
    v_lshlrev_b32 v{vT2}, 2, v{vT2}
    v_sub_u32 v{vT0}, v{vT0}, v{vT2}
    v_mov_b32 v{vT1}, 0x{f32hex(NEG)}
    """)
    for k in range(2):
        for kt in range(2):
            for r in range(4):
                sp = 56 + 2 * (r & 1)
                a(f"v_cmp_gt_i32 s[{sp}:{sp+1}], {32*k+16*kt+r}, v{vT0}")
                if r & 1:
                    a("s_nop 0")
                    a(f"v_cndmask_b32 v{MB(k,kt)+r-1}, 0, v{vT1}, s[56:57]")
                    a(f"v_cndmask_b32 v{MB(k,kt)+r}, 0, v{vT1}, s[58:59]")
    ZIN = list(range(128, 128 + 52))
    ZPRE = list(range(128 + 52, 256))
    for r in ZPRE: a(f"v_mov_b32 v{r}, 0")
    for r in range(8): a(f"v_mov_b32 v{CM(0)+r}, 0")
    a("s_waitcnt vmcnt(20)\ns_barrier")
    stamp(0)
    for f in A_ENTRY: a(rdK(f)[0])
    a.label(f"{N}_pro")
    sch.reset(A_ENTRY)
    dg = [21, 23, 25, 27]
    sch.phase(qk(0, [0, 1], lambda kt, qs: vr(CM(kt), 4) if qs == 0 else "0"),
              {2 * k: [rdK(10 + k)] for k in range(6)},
              [(0, f"v_mov_b32 v{r}, 0", 1) for r in ZIN],
              scal=[(0, t) for t in adv_rd()] + [(dg[3], t) for t in adv_wr(False)],
              fixed={dg[0] - 1: m0set(1, False)}, fixedv={g: [d] for g, d in zip(dg, dma(1, False))})
    a(UPD)
    a(f"""
    s_cmp_eq_u32 s{sPub}, 0
    s_cbranch_scc1 {N}_pro_n
    s_waitcnt vmcnt(4)
    s_barrier
    s_cmp_lg_u32 s{sW}, 0
    s_cbranch_scc1 {N}_pro_j
    v_mov_b32 v{vT0}, s{sBit}
    v_mov_b32 v{vT1}, 0
    s_lshl_b32 s{t0}, s{sHd}, 2
    s_mov_b64 exec, 1
    buffer_atomic_or v{vT0}, v{vT1}, {sr(SDBG,4)}, s{t0} offen sc1
    s_mov_b64 exec, -1
    s_branch {N}_pro_j
    """)
    a.label(f"{N}_pro_n")
    a("s_waitcnt vmcnt(16)\ns_barrier")
    a.label(f"{N}_pro_j")
    a.ext(m0set(0, False))
    for f in A_ENTRY: a(rdK(f)[0])
    a.ext(dma(0, False))
    def rowmax(p):
        for qs in range(2):
            s = [S(p, kt, qs) + r for kt in range(2) for r in range(4)]
            m = vT0 + qs
            a(f"v_max3_f32 v{m}, v{s[0]}, v{s[1]}, v{s[2]}")
            a(f"v_max3_f32 v{m}, v{m}, v{s[3]}, v{s[4]}")
            a(f"v_max3_f32 v{m}, v{m}, v{s[5]}, v{s[6]}")
            a(f"v_max_f32 v{m}, v{m}, v{s[7]}")
        xl(vT0, "max")
    def xl(m, op):
        for sw in ("32", "16"):
            a(f"v_mov_b32 v{vT2}, v{m}\nv_mov_b32 v{vT3}, v{m+1}\ns_nop 0")
            a(f"v_permlane{sw}_swap_b32 v{m}, v{vT2}\nv_permlane{sw}_swap_b32 v{m+1}, v{vT3}")
            a(f"v_{op}_f32 v{m}, v{m}, v{vT2}\nv_{op}_f32 v{m+1}, v{m+1}, v{vT3}")
    def plain(v):
        pt = False
        for x in v:
            if pt and x[2] == 1: a("s_nop 0")
            a(x[1]); pt = x[2] == 2
    def expw_plain(p, qs):
        v = expw(p, qs)
        plain([x for x in v if x[2] == 2] + [x for x in v if x[2] == 1])
    rowmax(0)
    for qs in range(2):
        for kt in range(2):
            for r in range(4): a(f"v_sub_f32 v{S(0,kt,qs)+r}, v{S(0,kt,qs)+r}, v{vT0+qs}")
    expw_plain(0, 0)
    for qs in range(2):
        for r in range(4): a(f"v_sub_f32 v{NEGM(qs)+r}, 0, v{vT0+qs}")
        a(f"v_mov_b32 v{vL+qs}, 0")
    a(f"""
    s_lshr_b32 s{sCnt}, s{sN}, 1
    s_lshl_b32 s{t0}, s{sSeg}, 1
    s_add_u32 s{sCnt}, s{sCnt}, s{t0}
    s_sub_u32 s{sCnt}, s{sCnt}, 3
    s_cbranch_scc0 {N}_loop
    """)
    plain(cm_ops(0, 1))
    a(f"s_branch {N}_T1")
    a(".p2align 6")
    a.label(f"{N}_loop")
    phaseA(0, "le")
    phaseB(0, post=[f"s_sub_u32 s{sCnt}, s{sCnt}, 1"])
    a(f"s_cbranch_scc1 {N}_exit")
    phaseA(1, "lo")
    phaseB(1)
    a(f"s_branch {N}_loop")
    a.label(f"{N}_L1")
    a(f"s_mov_b32 s{sBlk}, s{sI}")
    for f in B_ENTRY: a(rdV(f)[0])
    a.ext(qload())
    a.ext(m0set(1, False))
    expw_plain(1, 1)
    a.ext(dma(1, False)); a.ext(adv_wr(False))
    plain(check_ops())
    a(f"s_mov_b32 s{sRet}, {len(sites[1])}")
    branch_check(1, "L1")
    phaseB(1, expq=None, vm=32)
    a(f"v_mov_b32 v{vL+2}, v{NEGM(0)}\nv_mov_b32 v{vL+3}, v{NEGM(1)}")
    a(f"s_add_u32 s{t0}, s{sPart}, 16384")
    a(f"buffer_store_dwordx4 {vr(vL,4)}, v{vL16}, {sr(SWS,4)}, s{t0} offen sc1")
    def cvt_block(b):
        for r in range(4): a(f"v_cvt_pk_bf16_f32 v{b+r}, v{b+2*r}, v{b+2*r+1}")
    pend = []
    for k in range(16):
        b = 128 + 8 * k
        if k % 4 == 0: a(f"s_add_u32 s{t0}, s{sPart}, {k*1024}")
        cvt_block(b)
        a(f"buffer_store_dwordx4 {vr(b,4)}, v{vL16}, {sr(SWS,4)}, s{t0} offen offset:{(k%4)*1024} sc1")
    for r in ZPRE: a(f"v_mov_b32 v{r}, 0")
    a(f"""
    s_mov_b32 s{sSeg}, 0
    s_mov_b32 s{sPub}, 1
    s_mov_b32 s{sSrcEnd}, -1
    s_lshl_b32 s{sN}, s{sI}, 2
    s_add_u32 s{sN}, s{sN}, 4
    s_cmp_eq_u32 s{sI}, 0
    s_cselect_b32 s{t0}, 1.0, 0
    """)
    for r in range(8): a(f"v_mul_f32 v{CM(0)+r}, s{t0}, v{MB(0,0)+r}")
    a(f"s_waitcnt vmcnt(25)")
    stamp(1)
    a(f"s_branch {N}_pro")
    a.label(f"{N}_exit")
    a(f"s_cmp_lg_u32 s{sSeg}, 0\ns_cbranch_scc1 {N}_L1")
    stamp(2)
    plain(cm_ops(0, 0))
    def poll_issue():
        a(f"s_lshl_b32 s{t0}, s{sHd}, 2")
        a(f"buffer_load_dword v{vPm}, off, {sr(SDBG,4)}, s{t0} sc1")
    def part_loads():
        a(f"s_add_u32 s{t0}, s{sPart}, 16384")
        a(f"buffer_load_dwordx4 {vr(vPm,4)}, v{vL16}, {sr(SPT,4)}, s{t0} offen sc1")
        for k in range(16):
            if k % 4 == 0: a(f"s_add_u32 s{t0}, s{sPart}, {k*1024}")
            a(f"buffer_load_dwordx4 {ar(128+4*k,4)}, v{vL16}, {sr(SPT,4)}, s{t0} offen offset:{(k%4)*1024} sc1")
    poll_issue()
    phaseA(1, "T0", cinit=masked_c(0))
    phaseB(1, extra=cm_ops(0, 1))
    a(f"""
    s_cmp_eq_u32 s{sComb}, 0
    s_cbranch_scc1 {N}_T1
    s_waitcnt vmcnt(8)
    v_readfirstlane_b32 s{t1}, v{vPm}
    s_and_b32 s{sSeen}, s{t1}, s{sBit}
    s_cselect_b32 s{SPT+2}, {WS_BYTES}, 0
    """)
    a.label(f"{N}_T1")
    part_loads()
    phaseA(0, "T1", cinit=masked_c(0))
    phaseB(0, extra=cm_ops(1, 0), wo=True, vm=33)
    phaseA(1, "T2", cinit=masked_c(1), half=True, wo=True)
    phaseB(1, expq=1, extra=cm_ops(1, 1), wo=True, vm=33)
    phaseA(0, "T3", cinit=masked_c(1), half=True, expq=None, wo=True)
    phaseB(0, half=True, accq=(1,), expq=1, wo=True, nxt="V")
    a.ext(m0set(1, True))
    plain(check_ops())
    a.ext(dma(1, True)); a.ext(adv_wr(True))
    a(f"s_mov_b32 s{sRet}, {len(sites[1])}")
    branch_check(1, "T4")
    phaseB(1, half=True, accq=(1,), expq=None, wo=True, nxt="W")
    stamp(3)
    a(f"s_cmp_eq_u32 s{sComb}, 0\ns_cbranch_scc1 {N}_nocomb")
    a(f"s_cmp_lg_u32 s{sSeen}, 0\ns_cbranch_scc1 {N}_seen")
    a(f"s_mov_b32 s{t2}, {SPINMAX}")
    a.label(f"{N}_spin")
    a(f"s_sub_u32 s{t2}, s{t2}, 1\ns_cbranch_scc1 {N}_seen")
    poll_issue()
    a(f"""
    s_waitcnt vmcnt(0)
    v_readfirstlane_b32 s{t1}, v{vPm}
    s_and_b32 s{t1}, s{t1}, s{sBit}
    s_cbranch_scc0 {N}_spin
    s_mov_b32 s{SPT+2}, {WS_BYTES}
    """)
    part_loads()
    a("s_waitcnt vmcnt(0)")
    a.label(f"{N}_seen")
    a(f"""
    s_waitcnt vmcnt(28)
    v_sub_f32 v{vT0}, v{NEGM(0)}, v{vPm+2}
    v_sub_f32 v{vT1}, v{NEGM(1)}, v{vPm+3}
    v_max_f32 v{vT2}, v{vT0}, v{vT1}
    v_cmp_lt_f32 vcc, 0x{f32hex(opt.get('cthr', 16.0))}, v{vT2}
    s_cbranch_vccz {N}_cmb
    v_max_f32 v{vT2}, 0, v{vT0}
    v_max_f32 v{vT3}, 0, v{vT1}
    v_sub_f32 v{vT0}, v{vT0}, v{vT2}
    v_sub_f32 v{vT1}, v{vT1}, v{vT3}
    v_exp_f32 v{vT2}, -v{vT2}
    v_exp_f32 v{vT3}, -v{vT3}
    s_nop 0
    """)
    for qs in range(2):
        a(f"v_mul_f32 v{vL+qs}, v{vL+qs}, v{vT2+qs}")
        for dk in range(8):
            for r in range(8): a(f"v_mul_f32 v{OB(dk,qs)+r}, v{OB(dk,qs)+r}, v{vT2+qs}")
    a.label(f"{N}_cmb")
    a(f"v_exp_f32 v{vT0}, v{vT0}\nv_exp_f32 v{vT1}, v{vT1}\ns_nop 0")
    a(f"v_fmac_f32 v{vL}, v{vPm}, v{vT0}\nv_fmac_f32 v{vL+1}, v{vPm+1}, v{vT1}")
    for dk in range(8):
        for qs in range(2):
            b = OB(dk, qs)
            for r in range(4): a(f"v_accvgpr_read_b32 v{vE+r}, a{PP(dk,qs)+r}")
            for r in range(4):
                a(f"v_lshlrev_b32 v{vE+4+r}, 16, v{vE+r}")
                a(f"v_and_b32 v{vE+r}, s{sMask}, v{vE+r}")
            for r in range(4):
                a(f"v_fmac_f32 v{b+2*r}, v{vE+4+r}, v{vT0+qs}")
                a(f"v_fmac_f32 v{b+2*r+1}, v{vE+r}, v{vT0+qs}")
    a.label(f"{N}_nocomb")
    stamp(4)
    xl(vL, "add")
    a(f"""
    v_rcp_f32 v{vL}, v{vL}
    v_rcp_f32 v{vL+1}, v{vL+1}
    v_lshrrev_b32 v{vT0}, 2, v{vL16}
    s_lshl_b32 s{t0}, s{sHd}, 7
    s_lshl_b32 s{t1}, s{sBlk}, 3
    s_add_u32 s{t0}, s{t0}, s{t1}
    s_add_u32 s{t0}, s{t0}, s{sW}           ; h*128 + qsub
    s_lshl_b32 s{t1}, s{t0}, 6
    s_add_u32 s{t1}, s{t1}, {RL_OFF}
    s_mul_i32 s{sSt0}, s{t0}, {14*1024}
    s_add_u32 s{sSt0}, s{sSt0}, {SL_OFF}
    s_mov_b32 s{sSt1}, {DUMMY_OFF}
    s_mov_b64 exec, 0xffff
    buffer_store_dword v{vL}, v{vT0}, {sr(SWS,4)}, s{t1} offen
    buffer_store_dword v{vL+1}, v{vT0}, {sr(SWS,4)}, s{t1} offen offset:256
    s_mov_b64 exec, -1
    v_add_u32 v{vT1}, {4*14*1024}, v{vL16}
    s_mov_b32 s{sCnt}, 6
    """)
    for qs in range(2):
        for dk in range(8): cvt_block(OB(dk, qs))
    def outw(pr, soff, g0):
        v = []
        for qs in range(2):
            o = vOut + 4 * qs
            for r in range(4):
                s = S(pr, r >> 1, qs) + 2 * (r & 1)
                v.append((g0, f"v_cvt_pk_bf16_f32 v{o+r}, v{s}, v{s+1}", 1))
            v.append((g0, f"buffer_store_dwordx4 {vr(o,4)}, v{vL16 if qs == 0 else vT1}, {sr(SWS,4)}, s{soff} offen offset:{pr*1024}", 1))
        return v
    a(".p2align 6")
    a.label(f"{N}_oloop")
    sch.reset([100 + f for f in range(10) for _ in range(2)])
    mf = []
    for mt in range(4):
        for qs in range(2):
            for dk in range(8):
                d = S(mt >> 1, mt & 1, qs)
                mf.append((mm(d, F(mt * 8 + dk), vr(OB(dk, qs), 4), "0" if dk == 0 else vr(d, 4)), 100 + mt * 8 + dk))
    reads = {}
    for k in range(32):
        f = (10 + k) % 32
        rr = rdW(f)
        if k >= 22: rr = [(t, 300 + f) for t, _ in rr]
        reads[2 * k] = [rr[0]]; reads[2 * k + 1] = [rr[1]]
    d1, d0 = [21, 23, 25, 27], [53, 55, 57, 59]
    fv = {g: [d] for g, d in zip(d1 + d0, dma(1, True) + dma(0, True))}
    fv[30] = [UPDW[0]]; fv[31] = [UPDW[1]]; fv[32] = [UPDW[2]]; fv[44] = [UPDW[3]]
    sch.phase(mf, reads, outw(1, sSt1, 4) + outw(0, sSt0, 36),
              scal=[(8, t) for t in adv_rd()] + [(27, t) for t in adv_wr(True)] +
                   [(56, f"s_mov_b32 s{sSt1}, s{sSt0}"), (56, f"s_add_u32 s{sSt0}, s{sSt0}, 2048"), (60, f"s_sub_u32 s{sCnt}, s{sCnt}, 1")],
              fixed={20: m0set(1, True), 44: ["s_waitcnt vmcnt(16)", "s_barrier"], 52: m0set(0, True)}, fixedv=fv)
    a(f"s_cbranch_scc0 {N}_oloop")
    a("s_nop 4")
    plain(outw(1, sSt1, 0))
    if opt.get("stamp"):
        a(f"""
        s_waitcnt vmcnt(0)
        s_memtime s[{sTm+4}:{sTm+5}]
        s_memrealtime s[{sTm+6}:{sTm+7}]
        s_waitcnt lgkmcnt(0)
        s_sub_u32 s{t0}, s{sTm+4}, s{sTm}
        s_sub_u32 s{t1}, s{sTm+6}, s{sTm+2}
        v_mov_b32 v24, s{t0}
        v_mov_b32 v25, s{t1}
        v_mov_b32 v26, s{sTm+2}
        v_mov_b32 v27, s{sTm+6}
        s_lshl_b32 s{t2}, s2, 6
        s_lshl_b32 s{t3}, s{sW}, 4
        s_add_u32 s{t2}, s{t2}, s{t3}
        s_add_u32 s{t2}, s{t2}, {STAMP_OFF + MB_}
        v_mov_b32 v28, 0
        s_mov_b64 exec, 1
        buffer_store_dwordx4 v[24:27], v28, {sr(SWS,4)}, s{t2} offen
        """)
        for blk in range(2):
            for k in range(4):
                i = blk * 4 + k
                if i < 5:
                    a(f"s_sub_u32 s{t0}, s{sTm+8+2*i}, s{sTm}\nv_mov_b32 v{4+4*blk+k}, s{t0}")
                else:
                    a(f"v_mov_b32 v{4+4*blk+k}, s{sSeen}")
            a(f"s_add_u32 s{t2}, s{t2}, 65536")
            a(f"buffer_store_dwordx4 v[{4+4*blk}:{7+4*blk}], v28, {sr(SWS,4)}, s{t2} offen")
    a.label(f"{N}_done")
    a("s_endpgm")
    for p in range(2):
        a.label(f"{N}_rare{p}")
        a("s_nop 7")
        rowmax(p)
        a(f"v_max_f32 v{vT0}, 0, v{vT0}\nv_max_f32 v{vT1}, 0, v{vT1}")
        a(f"v_exp_f32 v{vT2}, -v{vT0}\nv_exp_f32 v{vT3}, -v{vT1}")
        for qs in range(2):
            for pp in range(2):
                for kt in range(2):
                    for r in range(4): a(f"v_sub_f32 v{S(pp,kt,qs)+r}, v{S(pp,kt,qs)+r}, v{vT0+qs}")
            for r in range(4): a(f"v_sub_f32 v{NEGM(qs)+r}, v{NEGM(qs)+r}, v{vT0+qs}")
            a(f"v_mul_f32 v{vL+qs}, v{vL+qs}, v{vT2+qs}")
            for dk in range(8):
                for r in range(8): a(f"v_mul_f32 v{OB(dk,qs)+r}, v{OB(dk,qs)+r}, v{vT2+qs}")
            expw_plain(p, qs)
        for k, tag in enumerate(sites[p][:-1]):
            a(f"s_cmp_eq_u32 s{sRet}, {k}\ns_cbranch_scc1 {N}_ret_{tag}")
        a(f"s_branch {N}_ret_{sites[p][-1]}")
    return a.text(), kernel_desc(N, 256 + 192, 100, 256), f"; @launch kernel={N} grid=(256,1,1) block=(256,1,1) lds=163840"
MB_ = 1 << 20
```

```python
import os
MB = 1 << 20
XN_OFF = 0
XN_BYTES = 2048 * 448 * 2
KV_OFF = 4 * MB
Q_OFF = 36 * MB
H_OFF = 52 * MB
SL_OFF = 60 * MB
RL_OFF = 89 * MB
DUMMY_OFF = 89 * MB + 512 * 1024
PART_OFF = 90 * MB
STAMP_OFF = 99 * MB
WS_BYTES = 268435456
LOG2E = 1.4426950408889634
QSCALE = LOG2E / 16.0
PART_STRIDE = 4 * 17 * 1024
REG = 40960
SPINMAX = 100000
```

```python
import re
def segs(text):
    lines = [l.strip() for l in text.split("\n")]
    lab = {l[:-1]: i for i, l in enumerate(lines) if l.endswith(":")}
    return lines, lab
def check(text, path, verbose=True):
    lines, lab = segs(text)
    vm = []; lg = []; bad = 0
    landed = {}
    rdone = {}
    shared = lambda p: p[0] in "XS"
    for (a, b) in path:
        for l in lines[lab[a]:lab[b]]:
            op = l.split()[0] if l else ""
            if op.startswith("buffer_"):
                p = l.split(";D ")[1].split()[0] if ";D " in l else None
                if p:
                    if p in lg or (shared(p) and rdone.get(p, "all") != "all"):
                        print("WAR", a, l); bad += 1
                    landed[p] = None
                vm.append(p)
            elif op.startswith("ds_"):
                p = l.split(";R ")[1].split()[0] if ";R " in l else None
                if p:
                    if p in vm or landed.get(p) is None or (shared(p) and landed[p] != "all"):
                        print("RAW", a, l, landed.get(p), p in vm); bad += 1
                    rdone[p] = "pend"
                lg.append(p)
            elif op == "s_waitcnt":
                m = re.search(r"vmcnt\((\d+)\)", l)
                if m:
                    while len(vm) > int(m[1]):
                        p = vm.pop(0)
                        if p and p not in vm: landed[p] = "own"
                m = re.search(r"lgkmcnt\((\d+)\)", l)
                if m:
                    while len(lg) > int(m[1]):
                        p = lg.pop(0)
                        if p and p not in lg: rdone[p] = "own"
            elif op == "s_barrier":
                for p in landed:
                    if landed[p] == "own": landed[p] = "all"
                for p in rdone:
                    if rdone[p] == "own": rdone[p] = "all"
    return bad
```

```python
import sys, json
HDR = open("recurrent_scan__compressed_kv_cla__swiglu_ffn__prompt.s.ref").read().split("; Override launch")[0]
def build(ks):
    out = HDR
    for t, d, l in ks: out += l + "\n"
    out += '.amdgcn_target "amdgcn-amd-amdhsa--gfx950"\n.text\n'
    for t, d, l in ks: out += t
    out += '.section .rodata,"a"\n'
    for t, d, l in ks: out += ".p2align 6\n" + d
    return out
if __name__ == "__main__":
    opt = json.loads(sys.argv[2]) if len(sys.argv) > 2 else {}
    from k1n import gen_k1
    from k2 import gen_k2
    from k3 import gen_k3
    ks = [gen_k1(opt=opt), gen_k2(opt=opt), gen_k3(opt=opt)]
    open(sys.argv[1], "w").write(build(ks))
```

```python
class Asm:
    def __init__(self):
        self.lines = []
        self._uid = 0
    def __call__(self, s):
        for l in s.split("\n"):
            l = l.strip()
            if l:
                self.lines.append(("    " + l) if not l.endswith(":") else l)
    def label(self, name):
        self.lines.append(name + ":")
    def uid(self, p="L"):
        self._uid += 1
        return f"{p}_{self._uid}"
    def ext(self, lst):
        for l in lst:
            self(l)
    def text(self):
        return "\n".join(self.lines) + "\n"

def vr(base, n=1, f="v"):
    return f"{f}{base}" if n == 1 else f"{f}[{base}:{base+n-1}]"
def ar(base, n=1):
    return vr(base, n, "a")
def sr(base, n=1):
    return vr(base, n, "s")

def interleave(mfmas, fillers):
    out = list(fillers.get(-1, []))
    for i, m in enumerate(mfmas):
        out.append(m)
        out.extend(fillers.get(i, []))
    return out

def kernel_desc(name, vgpr, sgpr, accum):
    return f""".amdhsa_kernel {name}
  .amdhsa_next_free_vgpr {vgpr}
  .amdhsa_next_free_sgpr {sgpr}
  .amdhsa_accum_offset {accum}
  .amdhsa_group_segment_fixed_size 0
  .amdhsa_kernarg_size 104
  .amdhsa_user_sgpr_count 2
  .amdhsa_user_sgpr_kernarg_segment_ptr 1
  .amdhsa_system_sgpr_workgroup_id_x 1
  .amdhsa_float_denorm_mode_32 3
  .amdhsa_float_denorm_mode_16_64 3
.end_amdhsa_kernel
"""

class Sched:
    def __init__(s, a):
        s.a = a; s.reset([]); s.vmq = []; s.nvm = 0
    def reset(s, frags):
        s.iss = list(frags); s.done = -1
    def wait_for(s, frag):
        ids = [i for i, f in enumerate(s.iss) if f == frag]
        if not ids or ids[-1] <= s.done: return None
        n = min(len(s.iss) - 1 - ids[-1], 15)
        s.done = len(s.iss) - 1 - n
        return f"s_waitcnt lgkmcnt({n})"
    def emit(s, t):
        if "@VM@" in t: t = t.replace("@VM@", str(min(s.nvm, 63)))
        if "@VT:" in t:
            tag = t.split("@VT:")[1].split("@")[0]
            ids = [i for i, f in enumerate(s.vmq) if f == tag]
            t = t.replace(f"@VT:{tag}@", str(min(len(s.vmq) - 1 - ids[-1], 63)))
        for l in t.split("\n"):
            if l.strip().startswith("buffer_"): s.vmq.append(l.split(";D ")[1].split()[0] if ";D " in l else "-")
        if "lgkmcnt(0)" in t: s.done = len(s.iss) - 1
        s.nvm += sum(1 for l in t.split("\n") if l.strip().startswith("buffer_"))
        s.a(t)
    def phase(s, mf, reads={}, valu=[], scal=[], fixed={}, fixedv={}, nvm0=0, carry=False):
        valu = list(valu); scal = list(scal); s.nvm = nvm0; s.over = 0
        e = s.emit
        w = s.wait_for(mf[0][1])
        if w: e(w)
        for g, (m, fr) in enumerate(mf):
            e(m)
            budget, shadow = 2, 1
            def sc(t):
                nonlocal budget, shadow
                e(t)
                if shadow: shadow = 0
                else: budget -= 1
            if g + 1 < len(mf):
                w = s.wait_for(mf[g + 1][1])
                if w: sc(w)
            for t in fixed.get(g, []): sc(t)
            if shadow and scal and scal[0][0] <= g: sc(scal.pop(0)[1])
            shadow = 0
            fvl = fixedv.get(g, [])
            first = [t for t in fvl if not t.startswith("v_")]
            for t in first: e(t); budget -= 1
            for t, f in reads.get(g, []): e(t); s.iss.append(f); budget -= 1
            hadv = False
            for t in fvl:
                if t not in first: e(t); budget -= 1; hadv = True
            while budget > 0:
                blocked = set(); pick = None
                for k, v in enumerate(valu):
                    grp = v[3] if len(v) > 3 else None
                    if grp in blocked: continue
                    if v[0] <= g and v[2] <= budget and not (hadv and "buffer_" in v[1]): pick = k; break
                    blocked.add(grp)
                if pick is None: break
                budget -= valu[pick][2]; hadv = hadv or valu[pick][1].startswith("v_"); e(valu.pop(pick)[1])
            if budget < 0: s.over -= budget
        if carry:
            for t in scal: e(t[1])
            return [(0,) + tuple(v[1:]) for v in valu]
        prev_trans = False
        for v in valu:
            if prev_trans and v[2] == 1: e("s_nop 0")
            e(v[1]); prev_trans = v[2] == 2; s.over += v[2]
        for t in scal: e(t[1])
```

```python
from asmlib import *
from layout import *
import k1n, p2
from k1n import *
from p2 import P2, SG, sFl, sY, sN, sW4K, vDma, vF0, sSpin, STP
NAME = "recurrent_scan__compressed_kv_cla__swiglu_ffn__prompt_kernel"
vQw, vQr = 4, 5
ALIAS = {"S0.0": ["P01"], "S0.1": ["P11"], "S1.0": ["P21"], "S1.1": ["P31"], "S2.0": ["P00", "XQ0"], "S2.1": ["P10", "XQ1"],
         "S3.0": ["P20", "XQ2"], "S3.1": ["P30", "XQ3"], "S4.0": ["X0"], "S4.1": ["X1"], **{f"XQ{k}": [f"P{k}0"] for k in range(4)}}

def gen(opt):
    a = Asm(); N = "fz"
    opt = dict(opt); opt.setdefault("kvpol", "sc1")
    P = P1(a, N, opt); R = P2(a, N, opt, P.sch)
    a(f".p2align 8\n.globl {NAME}\n.type {NAME},@function")
    a.label(NAME)
    a(f"s_cmp_lt_u32 s2, 256\ns_cbranch_scc1 {N}\ns_endpgm")
    a.label(N)
    if opt.get("hrot"): a(f"s_add_u32 s3, s2, {opt['hrot']}\ns_and_b32 s3, s3, 15\ns_and_b32 s2, s2, 0xf0\ns_or_b32 s2, s2, s3")
    if opt.get("stamp"): a(f"s_memtime s[{sTm}:{sTm+1}]\ns_memrealtime s[{sTm+10}:{sTm+11}]")
    J = lambda *l: "\n".join(l)
    fk = [f"s_lshl_b32 s{t0}, s{sH}, 6", f"s_add_u32 s{t0}, s{t0}, {FK_OFF}", f"s_lshl_b32 s{sFl}, s{sB}, 2", f"s_add_u32 s{sFl}, s{sFl}, s{t0}"]
    f1 = [f"s_lshl_b32 s{sFl}, s2, 2", f"s_add_u32 s{sFl}, s{sFl}, {F1_OFF}"]
    st = R.stream_setup()
    qn = [J(f"s_cmp_eq_u32 s{sN}, 0", f"s_cselect_b32 s{sQb}, {NULLO}, s{sQb}")]
    x21 = dict(scal=[(0, t) for t in fk + st + P.hq_setup() + qn + R.scal_setup()[:30]] + [(64, t) for t in f1],
               valu=[(0, "v_cmp_eq_u32 vcc, 0, v0", 1), (0, f"v_mov_b32 v{vF0}, 0x7fffff00", 1), (3, f"v_cndmask_b32 v{vF0}, v{vF0}, v0, vcc", 1),
                     (3, f"v_add_u32 v{vDma}, s{sW4K}, v{vSt}", 1), (3, f"v_add_u32 v{vQw}, 65536, v{vDma}", 1),
                     (3, f"v_lshlrev_b32 v{vQr}, 4, v0", 1), (3, f"v_add_u32 v{vQr}, 65536, v{vQr}", 1)],
               xfx={57: ["s_waitcnt vmcnt(@VT:Tkv@)"]},
               xfv={62: [f"buffer_store_dword v{vFd}, v{vF0}, {sr(SWS,4)}, s{sFl} offen sc1 ;FLAG"]})
    P.body(x21)
    a.label(f"{N}_last2")
    P.stamp(3); P.stamp(0, 2)
    KP = f"buffer_load_dword v{vPoll}, v{vPoll+1}, {sr(SWS,4)}, s{t0} offen sc1 ;D Lk"
    def qw(n, p): return [(0, f"ds_write_b128 v{vQw}, {vr(acc(4 + 2 * p, n), 4)} offset:{(2 * p + (n >> 2)) * 16384 + (n & 3) * 1024} ;W XQ{2 * p + (n >> 2)}", 1)]
    g0 = opt.get("kg", 44)
    xfx = {g0: ["s_waitcnt vmcnt(0)"], g0 + 2: ["s_cmp_eq_u64 vcc, 0"], g0 + 3: [f"s_cselect_b32 s{SG+2}, s{SG+2}, 0"]}
    xfv = {1: [KP], g0: [f"v_cmp_eq_u32 vcc, 0, v{vPoll} ;U Lk"]}
    g = g0 + 4
    def pre(h, adv):
        nonlocal g
        for k, t in enumerate(p2.m0set(h)): xfx[g + k] = [t]
        dg = [g + 2 + 4 * j if False else g + 2 + 3 * j for j in range(4)]
        for x, d in zip(dg, p2.dma(h, vDma, True)): xfv[x] = [d]
        if adv:
            for k, t in enumerate(p2.adv_wr()): xfx[dg[3] - 2 + k] = [t]
        g = dg[3] + 2
    pre(1, True); pre(0, False); pre(1, True); pre(0, False); pre(1, True)
    assert g < 128, g
    v = []
    for n in range(8): v += [x + ("q",) for x in packA(acc(4, n), acc(5, n), 85 + 2 * n) + qw(n, 0) + P.qst(n, 0)]
    for n in range(8): v += P.ffn(n, 53 + 2 * n)
    left = P.stage(0, False, valu=v, dma=0, nxt=False, xfx=xfx, xfv=xfv, scal=[(0, t) for t in R.scal_setup()[30:]], carry=True)
    e = P.sch.emit
    def plain(v):
        pt = False
        for x in v:
            if pt and x[2] == 1: e("s_nop 0")
            e(x[1]); pt = x[2] == 2 and x[1].startswith("v_")
    assert not any("ds_write" in x[1] for x in left)
    e("s_nop 0")
    P.stamp(1, 2)
    for n in range(8):
        T = vT + 4 * (n & 1)
        plain(fromAcc(T, n, 0) + packA(acc(6, n), T, 0) + qw(n, 1))
    for n in range(8): plain(P.qst(n, 1))
    e("s_waitcnt lgkmcnt(0)\ns_barrier")
    for qs in range(2):
        for dk in range(8):
            e(f"ds_read_b128 {p2.Q(qs, dk)}, v{vQr} offset:{(2 * (dk & 1) + qs) * 16384 + (dk >> 1) * 4096}")
    plain(left)
    if opt.get("stamp"):
        e(f"""s_lshl_b32 s{t2}, s2, 2
        s_add_u32 s{t2}, s{t2}, s{sW}
        s_lshl_b32 s{t2}, s{t2}, 8
        s_add_u32 s{t2}, s{t2}, {STAMP_OFF + 262144}
        v_subrev_u32 v24, s{sTm}, v6
        v_lshlrev_b32 v23, 2, v1
        buffer_store_dword v24, v23, {sr(SWS,4)}, s{t2} offen""")
    P.stamp(2, 2)
    e(f"s_cmp_eq_u32 s{SG+2}, 0\ns_cbranch_scc1 {N}_kslow")
    a.label(f"{N}_kok")
    P.stamp(3, 2)
    R.vec_setup()
    e("s_waitcnt vmcnt(@VT:S@1@) lgkmcnt(0)".replace("S@1@", "SX@").replace("@VT:SX@", str(min(len(P.sch.vmq) - 1 - max(i for i, x in enumerate(P.sch.vmq) if x == "S@1"), 63))))
    e("s_barrier")
    a.ext(p2.m0set(0))
    for f in p2.A_ENTRY: a(p2.rdK(f)[0])
    a.ext(p2.dma(0))
    R.body()
    if opt.get("stamp"):
        R.stamps_out()
        a(f"s_sub_u32 s{t2}, s{t2}, {MB + 3 * 65536}\nbuffer_store_dwordx4 v[24:27], v28, {sr(SWS,4)}, s{t2} offen\ns_nop 1")
        for i in range(4): a(f"s_sub_u32 s{t0}, s{sTm+2+2*i}, s{sTm}\nv_mov_b32 v{16+i}, s{t0}")
        a(f"s_add_u32 s{t2}, s{t2}, 65536\nbuffer_store_dwordx4 v[16:19], v28, {sr(SWS,4)}, s{t2} offen")
        a(f"s_add_u32 s{t2}, s{t2}, 65536\nbuffer_store_dword v4, v28, {sr(SWS,4)}, s{t2} offen")
    a("s_endpgm")
    a.label(f"{N}_kslow")
    R.spin("k", KP, f"v_cmp_eq_u32 vcc, 0, v{vPoll}\ns_cmp_eq_u64 vcc, 0")
    a(f"s_mov_b32 s{SG+2}, {WS_BYTES}\ns_sub_u32 s{p2.sSrc}, s{p2.sSrc}, {3 * p2.SLOT}\ns_add_u32 s{p2.sWrW}, s{sW4K}, {4 * p2.SLOT}")
    for h, adv in ((1, 1), (0, 0), (1, 1), (0, 0), (1, 1)):
        a.ext(p2.m0set(h)); a("s_nop 0"); a.ext(p2.dma(h, vDma, True))
        if adv: a.ext(p2.adv_wr())
    a(f"s_waitcnt vmcnt(16)\ns_branch {N}_kok")
    import trace
    for p in P.paths():
        p[-1] = p[-1] + ("Tkv",)
        for q in R.paths("Tq"): print("trace bad:", trace.check(a.text(), p + [(f"{N}_last2", f"{N}_pro")] + q, alias=ALIAS))
    return a.text(), kernel_desc(NAME, 512, 102, 256), f"; @launch {'' if opt.get('plain') else 'kernel=' + NAME + ' '}grid=(256,1,1) block=(256,1,1) lds=163840"
```

```python
from asmlib import *
from layout import *
from k0 import f32hex

SW = [4, 8, 12, 16]; SX, SWS, SPF, SDBG, STMP = 20, 24, 28, 32, 36
pX, pC, pWQ, pWUK, pWUV, pWO, pWG, pWU, pWD, pOUT, pDBG, pWS = 40, 42, 44, 46, 48, 50, 54, 56, 58, 60, 62, 64
sW, sWreg, sH, sB = 66, 67, 68, 69
sXs, sWa, sWb, sPfz = 70, 71, 72, 73
sPf, sPfStg, sStg, sFlagStg = 74, 75, 76, 77
sSt = 78
t0, t1, t2, t3 = 86, 87, 88, 89
sC16, sHb, sQb = 83, 84, 85
sTm = 90
vWA, vWG, vWB, vPf, vFo, vXo, vXr, vWr, vSt, vPoll = 2, 4, 6, 8, 9, 10, 14, 16, 20, 21
vFd = 23
vT = 24
def acc(o, n): return 32 + (o * 8 + n) * 4 if o < 7 else None
def accs(o, n): return vr(acc(o, n), 4) if o < 7 else ar(4 * n, 4)
def XF(par, n, ks): return ar(32 + par * 64 + (n * 2 + ks) * 4, 4)
def WF(o, ks, t=None):
    b = 160 + ((o & 3) * 2 + ks) * 4
    return ar(b, 4) if t is None else ar(b + 2 * t, 2)
def STASH(a, c, m): return 192 + ((a * 2 + c) * 4 + m) * 4
SG0 = [42, 50, 58, 66, 74, 82, 94, 102]
def wpiece(par, p): return (par ^ 1) * 4 + p

def rdW(par, o):
    return [(f"ds_read_b64_tr_b16 {WF(o, ks, t)}, v{vWr + 2 * (par ^ 1) + (o & 1)} offset:{((o >> 2) * 2 + ks) * 16384 + ((o >> 1) & 1) * 1024 + t * 256}", ("W", par, o, ks))
            for ks in range(2) for t in range(2)]
def rdX(par):
    return [(f"ds_read_b128 {XF(par, n, ks)}, v{vXr + ks} offset:{par * 16384 + n * 2048} ;R X{par}", ("X", par))
            for n in range(8) for ks in range(2)]
def dmaW(par, p, t2=False):
    return [f"buffer_load_dwordx4 v{(vWG if p < 2 and t2 else vWA) + (j >> 1)}, {sr(SW[(p & 2) + (j & 1)], 4)}, s{sWa if p < 2 else sWb} offen offset:{j * 1024} lds ;D P{p}{par}" for j in range(4)]
def dmaX(par, t2=False):
    return [f"buffer_load_dwordx4 v{vXo + j}, {sr(SX, 4)}, s{sXs} offen offset:{j * 1024} {'sc1 ' if t2 else ''}lds ;D X{par}" for j in range(4)]
def m0p(i): return f"s_add_u32 m0, s{sWreg}, {i * 16384}"
def store(src, c, m, imm, srd=SWS, pol="sc1"): return f"buffer_store_dwordx4 {src}, v{vSt}, {sr(srd, 4)}, s{sSt + c * 4 + m} offen offset:{imm} {pol} ;D Tkv"
def stash_store(k, pol):
    a, c, m = k >> 3, k & 1, (k >> 1) & 3
    return store(ar(STASH(a, c, m), 4), c, m, (1 + a) * 1024, SWS, pol)
POLL = f"buffer_load_dword v{vPoll}, v{vPoll+1}, {sr(SDBG, 4)}, 0 offen sc1"
def PF(k): return f"buffer_load_dword v{vT+7}, v{vPf}, {sr(SPF, 4)}, s{sPf} offen offset:{128 * k}"
OPT = {}
DG = [[33, 39, 45, 51], [57, 63, 69, 75], [97, 101, 105, 109], [113, 117, 121, 125]]
XG = [3, 9, 15, 21]
def vm_plan(par, t2=False):
    fv, fx = {}, {}
    for g, d in zip(XG, dmaX(par, t2)): fv.setdefault(g, []).append(d)
    fx[XG[0] - 1] = [m0p(8 + par)]
    fx[XG[3] + 1] = [f"s_add_u32 s{sXs}, s{sXs}, 128"]
    for p in range(4):
        for g, d in zip(DG[p], dmaW(par, p, t2)): fv.setdefault(g, []).append(d)
        fx[DG[p][0] - 3] = [m0p(wpiece(par, p))]
        r = sWa if p < 2 else sWb
        fx.setdefault(DG[p][3] + (1 if p != 2 else 2), []).append(f"s_add_u32 s{r}, s{r}, {32 * (3584 if p < 2 and t2 else 8192)}")
    return fv, fx
def canon(par):
    fv, _ = vm_plan(par)
    return [(l.split(";D ")[1].split()[0] if ";D " in l else "-") for g in sorted(fv) for l in fv[g]]

def cvt(d, a, b): return f"v_cvt_pk_bf16_f32 v{d}, v{a}, v{b}"
def packA(A, B, g): return [(g, cvt(A, A, A + 1), 1), (g, cvt(A + 1, A + 2, A + 3), 1), (g, cvt(A + 2, B, B + 1), 1), (g, cvt(A + 3, B + 2, B + 3), 1)]
def packB(A, B, g): return [(g, cvt(B + 3, B + 2, B + 3), 1), (g, cvt(B + 2, B, B + 1), 1), (g, cvt(B, A, A + 1), 1), (g, cvt(B + 1, A + 2, A + 3), 1)]
def packTo(D, A, B, g): return [(g, cvt(D, A, A + 1), 1), (g, cvt(D + 1, A + 2, A + 3), 1), (g, cvt(D + 2, B, B + 1), 1), (g, cvt(D + 3, B + 2, B + 3), 1)]
def toStash(S, A, g): return [(g, f"v_accvgpr_write_b32 a{S + r}, v{A + r}", 1) for r in range(4)]
def fromAcc(D, n, g): return [(g, f"v_accvgpr_read_b32 v{D + r}, a{4 * n + r}", 1) for r in range(4)]

def ln2(a, R, X, T, s0):
    def both(f):
        for k in range(2): a(f(R + 4 * k, X + 8 * k, T + 3 * k))
    def wsum(off):
        for d in ("quad_perm:[1,0,3,2]", "quad_perm:[2,3,0,1]", "row_half_mirror", "row_mirror"):
            a("s_nop 0")
            both(lambda R, X, T: f"v_add_f32_dpp v{T+off}, v{T+off}, v{T+off} {d} row_mask:0xf bank_mask:0xf")
        for sw in ("16", "32"):
            both(lambda R, X, T: f"v_mov_b32 v{T+1}, v{T+off}")
            a("s_nop 0")
            both(lambda R, X, T: f"v_permlane{sw}_swap_b32 v{T+off}, v{T+1}")
            both(lambda R, X, T: f"v_add_f32 v{T+off}, v{T+off}, v{T+1}")
    def rnd(off):
        both(lambda R, X, T: f"v_cvt_pk_bf16_f32 v{T+off}, v{T+off}, v{T+off}")
        both(lambda R, X, T: f"v_lshlrev_b32 v{T+off}, 16, v{T+off}")
    def unpack():
        for i in range(4):
            both(lambda R, X, T: f"v_lshlrev_b32 v{X+2*i}, 16, v{R+i}\nv_and_b32 v{X+2*i+1}, 0xffff0000, v{R+i}")
    unpack()
    both(lambda R, X, T: f"v_add_f32 v{T}, v{X}, v{X+1}")
    for i in range(2, 8): both(lambda R, X, T: f"v_add_f32 v{T}, v{T}, v{X+i}")
    wsum(0)
    both(lambda R, X, T: f"v_mul_f32 v{T}, 0x{f32hex(1.0/448)}, v{T}")
    both(lambda R, X, T: f"v_sub_f32 v{T+1}, v{X}, v{T}\nv_mul_f32 v{T+2}, v{T+1}, v{T+1}")
    for i in range(1, 8): both(lambda R, X, T: f"v_sub_f32 v{T+1}, v{X+i}, v{T}\nv_fmac_f32 v{T+2}, v{T+1}, v{T+1}")
    both(lambda R, X, T: f"v_cndmask_b32 v{T+2}, 0, v{T+2}, vcc")
    wsum(2)
    both(lambda R, X, T: f"v_mul_f32 v{T+2}, 0x{f32hex(1.0/448)}, v{T+2}")
    rnd(0); rnd(2)
    both(lambda R, X, T: f"v_add_f32 v{T+2}, 0x{f32hex(1e-5)}, v{T+2}")
    rnd(2)
    both(lambda R, X, T: f"v_sqrt_f32 v{T+2}, v{T+2}")
    a("s_nop 0")
    rnd(2)
    both(lambda R, X, T: f"v_rcp_f32 v{T+2}, v{T+2}")
    for i in range(8): both(lambda R, X, T: f"v_sub_f32 v{X+i}, v{X+i}, v{T}")
    both(lambda R, X, T: f"v_mul_f32 v{T+2}, 0x{f32hex(QSCALE)}, v{T+2}")
    for i in range(4): both(lambda R, X, T: cvt(R + i, X + 2 * i, X + 2 * i + 1))
    unpack()
    for i in range(8): both(lambda R, X, T: f"v_mul_f32 v{X+i}, v{X+i}, v{T+2}")
    for i in range(4): both(lambda R, X, T: cvt(R + i, X + 2 * i, X + 2 * i + 1))

def srd(d, lo, off, size):
    r = [f"s_add_u32 s{d}, s{lo}, s{off}", f"s_addc_u32 s{d+1}, s{lo+1}, 0"] if off is not None else [f"s_mov_b32 s{d}, s{lo}", f"s_mov_b32 s{d+1}, s{lo+1}"]
    return r + [size.replace("@", f"s{d+2}"), f"s_mov_b32 s{d+3}, 0x20000"]

def back1k(d): return [f"s_sub_u32 s{d}, s{d}, 1024", f"s_subb_u32 s{d+1}, s{d+1}, 0"]

class P1:
    def __init__(s, a, N, opt):
        s.a, s.N, s.opt = a, N, opt
        OPT.clear(); OPT.update(opt)
        s.sch = Sched(a)
        s.pol = opt.get("kvpol", "sc1")
    def stamp(s, i, pst=False):
        if s.opt.get("stamp") and int(s.opt.get("pst", 0)) == int(pst): s.a(f"s_memtime s[{sTm + 2 + 2 * i}:{sTm + 3 + 2 * i}]")
    def stage(s, par, swap=False, first=False, valu=[], stores={}, dma=1, nxt=True, seed=False, carry=False, xfv={}, xfx={}, scal=[]):
        sch = s.sch
        sch.reset([])
        if seed: sch.vmq = canon(par) + canon(par ^ 1)
        mf = []
        for o in range(8):
            for n in range(8):
                for ks in range(2):
                    A, B = (XF(par, n, ks), WF(o, ks)) if swap else (WF(o, ks), XF(par, n, ks))
                    c = "0" if first and ks == 0 else accs(o, n)
                    mf.append((f"v_mfma_f32_16x16x32_bf16 {accs(o, n)}, {A}, {B}, {c}", ("W", par, o, ks)))
        fv, fx = vm_plan(par, dma == 2) if dma else ({}, {})
        for g, l in stores.items(): fv.setdefault(g, []).append(l)
        for g, l in xfv.items(): fv.setdefault(g, []).extend(l)
        for g, l in xfx.items(): fx.setdefault(g, []).extend(l)
        reads = {}
        for o in range(8 if nxt else 6):
            pp, oo = (par, o + 2) if o < 6 else (par ^ 1, o - 6)
            for k, r in enumerate(rdW(pp, oo)): reads[16 * o + 2 + 2 * k] = [r]
            if oo % 4 == 0:
                fx.setdefault(16 * o - 1, []).insert(0, "s_waitcnt lgkmcnt(0)")
                fx.setdefault(16 * o, []).insert(0, f"s_waitcnt vmcnt(@VT:P{oo >> 1}{pp}@)")
                fx.setdefault(16 * o + 4, []).insert(0, f"s_waitcnt vmcnt(@VT:P{(oo >> 1) + 1}{pp}@)")
        if nxt:
            fx.setdefault(58, []).append(f"s_waitcnt vmcnt(@VT:X{par ^ 1}@)")
            fx.setdefault(59, []).append("s_barrier")
            for k, r in enumerate(rdX(par ^ 1)): reads[61 + 2 * k if k < 12 else 99 + 4 * (k - 12)] = [r]
            fx.setdefault(123, []).append("s_waitcnt lgkmcnt(0)")
            fx.setdefault(124, []).append("s_barrier")
        if s.opt.get("stamp") and nxt:
            fx.setdefault(1, []).append("s_memtime s[52:53]")
            fv.setdefault(119, []).append(f"v_cmp_eq_u32 vcc, s{sStg}, v1")
            fv.setdefault(124, []).append(f"v_mov_b32 v7, s52")
            fv.setdefault(126, []).append(f"v_cndmask_b32 v6, v6, v7, vcc")
        r = sch.phase(mf, reads, valu, scal=list(scal) + [(100, f"s_add_u32 s{sStg}, s{sStg}, 1")], fixed=fx, fixedv=fv, carry=carry)
        if s.opt.get("verbose"): print("stage over", sch.over, "left", len(r or []))
        return r
    def prologue(s):
        a, N = s.a, s.N
        a(f"""
        s_load_dwordx16 s[40:55], s[0:1], 0
        s_load_dwordx8 s[56:63], s[0:1], 64
        s_load_dwordx2 s[64:65], s[0:1], 96
        v_lshrrev_b32 v1, 6, v0
        s_and_b32 s{sH}, s2, 15
        v_readfirstlane_b32 s{sW}, v1
        v_and_b32 v1, 63, v0
        s_lshr_b32 s{sB}, s2, 4
        v_lshlrev_b32 v{vSt}, 4, v1
        s_lshl_b32 s{sWreg}, s{sW}, 12
        s_lshl_b32 s{t0}, s{sB}, 4
        s_add_u32 s{t0}, s{t0}, s{sH}
        s_lshl_b32 s{t0}, s{t0}, 2
        s_add_u32 s{t0}, s{t0}, s{sW}
        s_mul_i32 s{t1}, s{t0}, {2*896}
        s_lshl_b32 s{t3}, s{t0}, 12
        v_cmp_gt_u32 vcc, 56, v1
        v_mov_b32 v{vT}, 0x7fffff00
        ; X voffs
        v_lshrrev_b32 v{vT+1}, 3, v1
        s_lshl_b32 s{t2}, s{sW}, 5
        v_cndmask_b32 v22, v{vT}, v{vSt}, vcc
        v_add_u32 v{vT+1}, s{t2}, v{vT+1}
        v_lshlrev_b32 v{vT+1}, 11, v{vT+1}
        v_lshrrev_b32 v{vT+2}, 4, v1         ; g
        v_and_b32 v{vT+3}, 7, v1
        v_xor_b32 v{vT+3}, v{vT+3}, v{vT+2}
        v_lshl_add_u32 v{vXo}, v{vT+3}, 4, v{vT+1}
        v_xor_b32 v{vT+3}, 4, v{vT+3}
        v_lshl_add_u32 v{vXo+1}, v{vT+3}, 4, v{vT+1}
        v_add_u32 v{vXo+2}, {2*(16384-1024)}, v{vXo}
        v_add_u32 v{vXo+1}, {16384-1024}, v{vXo+1}
        v_add_u32 v{vXo+3}, {2*(16384-1024)}, v{vXo+1}
        ; W voffs
        v_lshrrev_b32 v{vT+4}, 5, v1
        v_lshlrev_b32 v{vT+4}, 1, v{vT+4}
        v_and_b32 v{vT+3}, 3, v1
        v_xor_b32 v{vT+4}, v{vT+4}, v{vT+3}
        v_lshlrev_b32 v{vWG}, 4, v{vT+4}     ; chunk*16
        v_lshrrev_b32 v{vT+1}, 2, v1
        v_lshl_add_u32 v{vWA}, v{vT+1}, 13, v{vWG}
        """)
        a(f"v_add_u32 v{vWA+1}, {16*8192-2048}, v{vWA}")
        pre, post, post2 = s.pf_first()
        a(pre)
        a(f"""
        s_lshl_b32 s{sXs}, s{sB}, 18
        s_mov_b32 s{sWa}, 0
        s_mov_b32 s{sWb}, 0
        s_lshl_b32 s{t0}, s{sH}, 9
        s_and_b32 s{t2}, s{sW}, 1
        s_lshl_b32 s{t2}, s{t2}, 8
        s_add_u32 s{t0}, s{t0}, s{t2}
        s_waitcnt lgkmcnt(0)
        """)
        s.stamp(0, True)
        pf0 = s.opt.get("pf0", 2)
        a(post if pf0 > 0 else post.split("buffer")[0])
        a.ext(srd(STMP, pX, None, f"s_mov_b32 @, {XN_BYTES}"))
        a.ext(srd(SX, pC, None, f"s_mov_b32 @, {2048*2048}"))
        a(f"buffer_load_dwordx4 v[32:35], v22, {sr(STMP,4)}, s{t1} offen")
        a(f"buffer_load_dwordx4 v[36:39], v22, {sr(STMP,4)}, s{t1} offen offset:896")
        s.npf = 0
        if pf0 == 2: a(post2); s.npf = 1
        a(f"s_cmp_lt_u32 s{sW}, 2\ns_cselect_b32 s52, s{pWUK}, s{pWUV}\ns_cselect_b32 s53, s{pWUK+1}, s{pWUV+1}")
        for p in range(4):
            a.ext(srd(SW[p], 52, t0, f"s_sub_u32 @, {1024*8192 + (p & 1) * 1024}, s{t0}"))
            if p & 1: a.ext(back1k(SW[p]))
            if p < 3: a(f"s_add_u32 s{t0}, s{t0}, 64")
        if s.opt.get("now"):
            for p in range(4): a(f"s_mov_b32 s{SW[p]+2}, 0")
        if s.opt.get("nox"): a(f"s_mov_b32 s{SX+2}, 0")
        for par in range(2):
            fv, fx = vm_plan(par)
            for g in range(128):
                for t in fx.get(g, []): a(t)
                if fx.get(g) and "m0" in fx[g][-1]: a("s_nop 0")
                for t in fv.get(g, []): a(t)
        s.stamp(1, True)
        s.npf2 = 0
        if pf0 in (-1, 3): a(post2); s.npf2 = 1
        a.ext(srd(SWS, pWS, None, f"s_mov_b32 @, {WS_BYTES}"))
        a.ext(srd(SDBG, pDBG, None, f"s_mov_b32 @, 0"))
        s.pf_setup()
        a(f"""
        s_mul_i32 s{t0}, s{sH}, {KVS}
        s_lshl_b32 s{t1}, s{sB}, 17
        s_add_u32 s{t0}, s{t0}, s{t1}
        s_add_u32 s{t0}, s{t0}, {KV_OFF}
        s_lshl_b32 s{t1}, s{sW}, 12          ; K: 4w KB
        s_lshl_b32 s{t2}, s{sW}, 13          ; V: 16K + 8(w-2) KB
        s_cmp_lt_u32 s{sW}, 2
        s_cselect_b32 s{t1}, s{t1}, s{t2}
        s_cselect_b32 s{t2}, 2, 1
        s_lshl_b32 s{t2}, s{t2}, 12
        s_add_u32 s{sSt}, s{t0}, s{t1}
        s_add_u32 s{sSt+4}, s{sSt}, s{t2}
        """)
        for m in range(1, 4):
            a(f"s_add_u32 s{sSt+m}, s{sSt}, {m*32768}\ns_add_u32 s{sSt+4+m}, s{sSt+4}, {m*32768}")
        a(f"""
        v_and_b32 v{vT}, 15, v1
        v_lshrrev_b32 v{vT+1}, 1, v{vT}
        v_xor_b32 v{vT+1}, v{vT+1}, v{vT+2}
        v_lshlrev_b32 v{vT}, 7, v{vT}
        v_add_u32 v{vT}, 131072, v{vT}
        v_lshl_add_u32 v{vXr}, v{vT+1}, 4, v{vT}
        v_xor_b32 v{vT+1}, 4, v{vT+1}
        v_lshl_add_u32 v{vXr+1}, v{vT+1}, 4, v{vT}
        v_bfe_u32 v{vT}, v1, 2, 2
        v_and_b32 v{vT+1}, 1, v{vT+2}
        v_lshl_add_u32 v{vT}, v{vT+1}, 3, v{vT}
        v_lshlrev_b32 v{vT}, 6, v{vT}
        v_lshl_add_u32 v{vT}, v{vT+3}, 3, v{vT}
        v_lshrrev_b32 v{vT+4}, 5, v1
        v_lshl_add_u32 v{vT}, v{vT+4}, 11, v{vT}
        v_add_u32 v{vT}, s{sWreg}, v{vT}
        v_lshl_add_u32 v{vWr}, v{vT+1}, 5, v{vT}
        v_xor_b32 v{vWr+1}, 32, v{vWr}
        v_add_u32 v{vWr+2}, 65536, v{vWr}
        v_add_u32 v{vWr+3}, 65536, v{vWr+1}
        s_mov_b32 s{sStg}, 0
        v_lshrrev_b32 v{vT+1}, 2, v1
        v_mul_u32_u24 v{vT+1}, 3584, v{vT+1}
        v_add_u32 v{vWG}, v{vT+1}, v{vWG}
        v_add_u32 v{vWG+1}, {16*3584-2048}, v{vWG}
        s_lshl_b32 s{t0}, 1, s{sH}
        v_mov_b32 v{vFd}, s{t0}
        s_lshl_b32 s{t0}, s{sB}, 2
        v_lshlrev_b32 v{vFo}, 10, v0
        v_add_u32 v{vFo}, s{t0}, v{vFo}
        s_and_b32 s{sFlagStg}, s{sB}, 7
        s_add_u32 s{sFlagStg}, s{sFlagStg}, 2
        """)
        for r in range(4): a(f"v_accvgpr_write_b32 a{192+r}, 0")
        a("s_nop 1")
        Z = lambda d: a(f"v_mfma_f32_32x32x16_bf16 {d}, a[192:195], a[192:195], 0")
        for r in range(64, 256, 16): Z(vr(r, 16))
        Z(ar(0, 16)); Z(ar(16, 16))
        n2 = len(canon(0)) + len(canon(1)) + s.npf + s.npf2
        a(f"s_waitcnt vmcnt({n2})")
        s.stamp(2, True)
        ln2(a, 32, 40, vT, t0)
        s.stamp(3, True)
        a(f"buffer_store_dwordx4 v[32:35], v22, {sr(SWS,4)}, s{t3} offen sc1")
        a(f"buffer_store_dwordx4 v[36:39], v22, {sr(SWS,4)}, s{t3} offen offset:2048 sc1")
        a(f"v_lshlrev_b32 v{vT}, 2, v0\nv_mov_b32 v{vT+1}, 0\ns_lshl_b32 s{t0}, s2, 5\ns_add_u32 s{t0}, s{t0}, {FLAG_OFF}\ns_add_u32 s{STMP+2}, s{t0}, 32")
        a(f"s_mov_b32 s{STMP}, s{pWS}\ns_mov_b32 s{STMP+1}, s{pWS+1}\nbuffer_store_dword v{vT+1}, v{vT}, {sr(STMP,4)}, s{t0} offen sc1")
        Z(vr(48, 16))
        a(f"v_and_b32 v{vPoll+1}, 15, v1\nv_lshlrev_b32 v{vPoll+1}, 2, v{vPoll+1}")
        a(f"s_waitcnt vmcnt({3 + n2 - s.npf - 1 - max(i for i, x in enumerate(canon(0)) if x == 'P10')})\ns_barrier")
        s.stamp(0)
        for r in rdW(0, 0) + rdX(0) + rdW(0, 1): a(r[0])
        Z(vr(32, 16))
        a("s_waitcnt lgkmcnt(0)\ns_barrier\ns_nop 7")
    def pf_first(s):
        pre = f"""
        s_cmp_lt_u32 s{sW}, 2
        s_cselect_b32 s{t0}, 2, 1
        s_cselect_b32 s{t2}, 3, 1
        s_cselect_b32 s3, 13, 11
        v_lshrrev_b32 v{vT+5}, s{t0}, v1
        v_and_b32 v{vT+6}, s{t2}, v1
        v_lshlrev_b32 v{vT+6}, 7, v{vT+6}
        v_lshlrev_b32 v{vPf}, s3, v{vT+5}
        v_add_u32 v{vPf}, v{vPf}, v{vT+6}
        s_lshl_b32 s{SPF+2}, s{t0}, 22
        s_mov_b32 s{SPF+3}, 0x20000
        s_lshl_b32 s{sPf}, s{sB}, 16           ; W: 8b rows
        s_lshl_b32 s{t0}, s{sH}, 9
        s_add_u32 s{sPf}, s{sPf}, s{t0}
        s_lshl_b32 s{t0}, s{sB}, 1
        s_lshr_b32 s{t2}, s{sH}, 3
        s_add_u32 s{t0}, s{t0}, s{t2}
        s_lshl_b32 s{t0}, s{t0}, 1
        s_add_u32 s{t0}, s{t0}, s{sW}
        s_sub_u32 s{t0}, s{t0}, 2
        s_lshl_b32 s{t0}, s{t0}, 16
        s_movk_i32 s{t2}, 256
        s_cmp_lt_u32 s{sW}, 2
        s_cselect_b32 s{sPf}, s{sPf}, s{t0}
        s_cselect_b32 s{sPfStg}, {128*8192}, s{t2}
        s_cselect_b32 s{t0}, 32, 64
        v_cmp_gt_u32 s[{STMP}:{STMP+1}], s{t0}, v1
        s_add_u32 s{sPfStg}, s{sPfStg}, s{sPf}
        s_nop 0
        v_cndmask_b32 v{vPf}, v{vT}, v{vPf}, s[{STMP}:{STMP+1}]
        """
        post = f"""
        s_cmp_lt_u32 s{sW}, 2
        s_cselect_b32 s{SPF}, s{pWUK}, s{pC}
        s_cselect_b32 s{SPF+1}, s{pWUK+1}, s{pC+1}
        s_cmp_eq_u32 s{sW}, 1
        s_cselect_b32 s{SPF}, s{pWUV}, s{SPF}
        s_cselect_b32 s{SPF+1}, s{pWUV+1}, s{SPF+1}
        buffer_load_dword v{vT+7}, v{vPf}, {sr(SPF, 4)}, s{sPf} offen
        """
        post2 = f"buffer_load_dword v{vT+7}, v{vPf}, {sr(SPF, 4)}, s{sPfStg} offen"
        return pre, post, post2
    def pf_setup(s):
        a = s.a
        a(f"""
        s_and_b32 s{t0}, s{sB}, 7
        s_sub_u32 s{sPfStg}, s{t0}, 1
        s_max_i32 s{sPfStg}, s{sPfStg}, 0
        s_lshl_b32 s{t0}, s{t0}, 1
        s_lshr_b32 s{t1}, s{sB}, 3
        s_add_u32 s{t0}, s{t0}, s{t1}
        s_lshl_b32 s{t0}, s{t0}, 4
        s_add_u32 s{t0}, s{t0}, s{sH}
        s_lshl_b32 s{t0}, s{t0}, 2
        s_add_u32 s{t0}, s{t0}, s{sW}          ; u
        s_bitcmp1_b32 s{t0}, 0
        s_cselect_b32 s{SPF}, s{pWUV}, s{pWUK}
        s_cselect_b32 s{SPF+1}, s{pWUV+1}, s{pWUK+1}
        s_lshr_b32 s{sPf}, s{t0}, 1            ; (u-128)/2 + 64
        s_cmp_lt_u32 s{t0}, 128
        s_cselect_b32 s{SPF}, s{pC}, s{SPF}
        s_cselect_b32 s{SPF+1}, s{pC+1}, s{SPF+1}
        s_cselect_b32 s{sPf}, s{t0}, s{sPf}
        """)
        st = 512
        for p, n in ((pWQ, 112), (pWG, 49), (pWU, 49), (pWO, 112), (pWD, 49)):
            a(f"s_sub_u32 s{t1}, s{t0}, {st}\ns_cselect_b32 s{SPF}, s{SPF}, s{p}\ns_cselect_b32 s{SPF+1}, s{SPF+1}, s{p+1}\ns_cselect_b32 s{sPf}, s{sPf}, s{t1}")
            st += n
        a(f"""
        s_lshl_b32 s{sPf}, s{sPf}, 15
        s_add_u32 s{sPfz}, s{sPf}, 32768
        s_cmp_lt_u32 s{t0}, {st}
        s_cselect_b32 s{sPfz}, s{sPfz}, 0
        v_lshlrev_b32 v{vPf}, 9, v1
        """)
        if s.opt.get("nopf1"): a(f"s_mov_b32 s{sPfz}, 0")
    def lncheck(s, tag):
        a, N = s.a, s.N
        a(f"""
        v_cmp_ne_u32 vcc, 0xffff, v{vPoll}
        s_mov_b32 s{SX}, s{pWS}
        s_mov_b32 s{SX+1}, s{pWS+1}
        s_lshl_b32 s{sXs}, s{sB}, 18
        s_cbranch_vccz {N}_go{tag}
        s_mov_b32 s{t1}, {SPINMAX}
        s_mov_b32 s{SDBG+2}, 256
        """)
        a.label(f"{N}_spin{tag}")
        a(f"""
        s_sub_u32 s{t1}, s{t1}, 1
        s_cbranch_scc1 {N}_go{tag}
        {POLL}
        s_waitcnt vmcnt(0)
        v_cmp_ne_u32 vcc, 0xffff, v{vPoll}
        s_cbranch_vccnz {N}_spin{tag}
        """)
        a.label(f"{N}_go{tag}")
    def switch(s):
        J = lambda l: "\n".join(l)
        r = [f"s_lshl_b32 s{t0}, s{sH}, 8", f"s_lshl_b32 s{t1}, s{sW}, 6", f"s_add_u32 s{t0}, s{t0}, s{t1}",
             f"s_sub_u32 s{t1}, {448*3584}, s{t0}", f"s_add_u32 s{t2}, s{t1}, 1024",
             J([f"s_cmp_lt_u32 s{sH}, 14", f"s_cselect_b32 s{SW[0]+2}, s{t1}, 0", f"s_cselect_b32 s{SW[1]+2}, s{t2}, 0"]),
             J(srd(SW[0], pWG, t0, "")[:2]), J(srd(SW[1], pWU, t0, "")[:2]), J(back1k(SW[1])), f"s_mov_b32 s{sWa}, 0",
             f"s_lshl_b32 s{t0}, s{t0}, 1", J(srd(SW[2], pWQ, t0, "")[:2]), f"s_sub_u32 s{SW[2]+2}, {448*8192}, s{t0}",
             f"s_add_u32 s{t0}, s{t0}, 64", J(srd(SW[3], pWQ, t0, "")[:2]), J(back1k(SW[3])), f"s_sub_u32 s{SW[3]+2}, {448*8192+1024}, s{t0}",
             f"s_mov_b32 s{sWb}, 0"]
        return [(3, x) for x in r]
    def epiK(s):
        v = []
        for n in range(8): v += packA(acc(0, n), acc(1, n), 21 + 2 * n)
        for p in (1, 2):
            for n in range(8):
                v += packA(acc(2 * p, n), acc(2 * p + 1, n), 32 * p + 21 + 2 * n) + toStash(STASH(p - 1, n & 1, n >> 1), acc(2 * p, n), 0)
        st1 = [store(vr(acc(0, n), 4), n & 1, n >> 1, 0, SWS, s.pol) for n in range(8)]
        v2 = []
        for n in range(8):
            T = vT + 4 * (n & 1)
            v2 += fromAcc(T, n, 3) + packA(acc(6, n), T, 3)
        st2 = [store(vr(acc(6, n), 4), n & 1, n >> 1, 3072, SWS, s.pol) for n in range(8)]
        return v, st1, v2, st2
    def epiV(s):
        v = []
        for o in (0, 3, 1, 2, 4, 5, 6):
            for m in range(4):
                g = 16 * o + 4 * m + 8
                A, B = acc(o, 2 * m), acc(o, 2 * m + 1)
                if o in (0, 3): v += [x + ("hi",) for x in packB(A, B, g)]
                elif o == 4: v += packB(A, B, g)
                else: v += packA(A, B, g) + toStash(STASH((o & 3) - 1, o >> 2, m), A, g)
        st1 = [store(vr(acc(o, 2 * m + 1), 4), 0, m, o * 1024, SWS, s.pol) for o in (0, 3) for m in range(4)]
        v2 = []
        for m in range(4):
            v2 += fromAcc(vT, 2 * m, 3) + fromAcc(vT + 4, 2 * m + 1, 3) + packTo(acc(6, 4 + m), vT, vT + 4, 3)
        st2 = [store(vr(acc(4, 2 * m + 1), 4), 1, m, 0, SWS, s.pol) for m in range(4)] + \
              [store(vr(acc(6, 4 + m), 4), 1, m, 3072, SWS, s.pol) for m in range(4)]
        return v, st1, v2, st2
    def ffn(s, n, g):
        G = [acc(0, n) + r for r in range(4)] + [acc(1, n) + r for r in range(4)]
        U = [acc(2, n) + r for r in range(4)] + [acc(3, n) + r for r in range(4)]
        v = [(g, f"v_mul_f32 v{u}, v{u}, v{x}", 1) for u, x in zip(U, G)]
        v += [(g, f"v_mul_f32 v{x}, s{sC16}, v{x}", 1) for x in G]
        v += [(g, f"v_exp_f32 v{x}, v{x}", 2) for x in G]
        v += [(g, f"v_add_f32 v{x}, 1.0, v{x}", 1) for x in G]
        v += [(g, f"v_rcp_f32 v{x}, v{x}", 2) for x in G]
        v += [(g, f"v_mul_f32 v{u}, v{u}, v{x}", 1) for u, x in zip(U, G)]
        v += packA(acc(2, n), acc(3, n), g)
        v += [(g, f"s_add_u32 s{t2}, s{sHb}, {n * 56 * 1024}\nbuffer_store_dwordx4 {vr(acc(2, n), 4)}, v{vSt}, {sr(SWS, 4)}, s{t2} offen {s.pol} ;D Tq", 2)]
        return v
    def body(s, x21={}):
        a, N = s.a, s.N
        s.prologue()
        a(f"s_cmp_lt_u32 s{sW}, 2\ns_cbranch_scc1 {N}_N0")
        SG = s.opt.get("SG", [42, 48, 54, 66, 78, 84, 90, 94])
        cx = {25: [f"s_cmp_eq_u32 s{sStg}, s{sFlagStg}"], 26: [f"s_cselect_b32 s{SDBG+2}, 256, 0"],
              78: [f"s_cmp_eq_u32 s{sStg}, s{sPfStg}"], 79: [f"s_cselect_b32 s{SPF+2}, s{sPfz}, 0"]}
        cv = {27: [f"buffer_atomic_or v{vFd}, v{vFo}, {sr(SDBG,4)}, 0 offen sc1"], **{85 + 2 * k: [PF(k)] for k in range(4)}}
        for tag, swap in (("V", True), ("N", False)):
            a(".p2align 6")
            a.label(f"{N}_{tag}0")
            s.stage(0, swap, seed=True, xfx={**cx, 28: [f"s_cmp_eq_u32 s{sStg}, 12"], 29: [f"s_cselect_b32 s{SDBG+2}, 256, 0"]}, xfv={**cv, 30: [POLL]})
            s.stage(1, swap, xfx={**cx, 127: [f"s_cmp_lg_u32 s{sStg}, 14"]}, xfv=cv)
            a(f"s_cbranch_scc1 {N}_{tag}0")
            a.label(f"{N}_last{tag}")
            s.lncheck(tag)
            s.stage(0, swap, dma=2, scal=s.switch())
            s.stamp(1)
            v, st1, v2, st2 = s.epiV() if swap else s.epiK()
            left = s.stage(1, swap, dma=2, valu=v, stores=dict(zip(SG, st1)), carry=True)
            s.stage(0, False, dma=2, first=True, valu=left + v2, stores=dict(zip(SG, st2)))
            s.stamp(2)
            if tag == "V": a(f"s_branch {N}_T2")
            a.label(f"{N}_end{tag}")
        a.label(f"{N}_T2")
        cnt = s.opt.get("stcnt", [4, 4, 4, 4, 0]); k = 0
        for i in range(5):
            g = [27, 81, 87, 93, 60, 48, 42, 54][:cnt[i]]
            s.stage((i + 1) & 1, dma=2 if i < 4 else 0, stores={x: stash_store(k + j, s.pol) for j, x in enumerate(g)}, **(x21 if i == 4 else {}))
            k += cnt[i]
        assert k == 16
    def paths(s):
        N = s.N
        return [[(N, f"{N}_V0")] + [(f"{N}_{t}0", f"{N}_last{t}")] * 7 + [(f"{N}_go{t}", f"{N}_end{t}"), (f"{N}_T2", f"{N}_last2")] for t in "VN"]

    def hq_setup(s):
        J = lambda *l: "\n".join(l)
        return [f"s_mul_i32 s{sHb}, s{sB}, {8*56}", f"s_lshl_b32 s{t1}, s{sH}, 2", f"s_add_u32 s{sHb}, s{sHb}, s{t1}", f"s_add_u32 s{sHb}, s{sHb}, s{sW}",
                f"s_lshl_b32 s{sHb}, s{sHb}, 10", f"s_add_u32 s{sHb}, s{sHb}, {H_OFF}", J(f"s_cmp_lt_u32 s{sH}, 14", f"s_cselect_b32 s{sHb}, s{sHb}, {NULLO}"),
                f"s_lshl_b32 s{sQb}, s{sH}, 20", f"s_lshl_b32 s{t2}, s{sB}, 16", f"s_add_u32 s{sQb}, s{sQb}, s{t2}", f"s_lshl_b32 s{t2}, s{sW}, 11",
                f"s_add_u32 s{sQb}, s{sQb}, s{t2}", f"s_add_u32 s{sQb}, s{sQb}, {Q_OFF}", f"s_mov_b32 s{sC16}, 0x{f32hex(-16.0)}"]
    def qst(s, n, p):
        return [(0, f"s_add_u32 s{t2}, s{sQb}, {(n & 3) * 16384 + (n >> 2) * 8192}\nbuffer_store_dwordx4 {vr(acc(4 + 2 * p, n), 4)}, v{vSt}, {sr(SWS, 4)}, s{t2} offen offset:{p * 1024} {s.pol} ;D Tq", 2)]
```

```python
import os
MB = 1 << 20
XN_OFF = 0
XN_BYTES = 2048 * 448 * 2
KV_OFF = 4 * MB + 32768
KVS = 65 * 32768
Q_OFF = 38 * MB
H_OFF = 54 * MB
SL_OFF = 62 * MB
SLS = 128 * 14 * 1024
PART_OFF = 103 * MB
FLAG_OFF = 112 * MB
F3_OFF, F1_OFF, FK_OFF = FLAG_OFF + 2048, FLAG_OFF + 4096, FLAG_OFF + 6144
STAMP_OFF = 113 * MB
WS_BYTES = 268435456
NULLO = 0x80000000
LOG2E = 1.4426950408889634
QSCALE = LOG2E / 16.0
SPINMAX = 100000
```

```python
from asmlib import *
from layout import *
from k0 import f32hex

SW = [4, 8, 12, 16]; SX, SWS, SPF, SDBG, STMP = 20, 24, 28, 32, 36
pX, pC, pWQ, pWUK, pWUV, pWO, pWG, pWU, pWD, pOUT, pDBG, pWS = 40, 42, 44, 46, 48, 50, 54, 56, 58, 60, 62, 64
sW, sWreg, sH, sB = 66, 67, 68, 69
sXs, sWa, sWb, sPfz = 70, 71, 72, 73
sPf, sPfStg, sStg, sFlagStg = 74, 75, 76, 77
sSt = 78
t0, t1, t2, t3 = 86, 87, 88, 89
sTm = 90
vWA, vWG, vWB, vPf, vFo, vXo, vXr, vWr, vSt, vPoll = 2, 4, 6, 8, 9, 10, 14, 18, 20, 21
vFd = 23
vT = 24
def acc(o, n): return 32 + (o * 8 + n) * 4 if o < 7 else None
def accs(o, n): return vr(acc(o, n), 4) if o < 7 else ar(4 * n, 4)
def XF(par, n, ks): return ar(32 + par * 64 + (n * 2 + ks) * 4, 4)
def WF(o, ks, t=None):
    b = 160 + ((o & 3) * 2 + ks) * 4
    return ar(b, 4) if t is None else ar(b + 2 * t, 2)
def STASH(a, c, m): return 192 + ((a * 2 + c) * 4 + m) * 4
SG0 = [42, 50, 58, 66, 74, 82, 94, 102]
def wpiece(par, p): return (par ^ 1) * 4 + p

def rdW(par, o):
    return [(f"ds_read_b64_tr_b16 {WF(o, ks, t)}, v{vWr + (o & 1)} offset:{wpiece(par, (o >> 2) * 2 + ks) * 4096 + ((o >> 1) & 1) * 1024 + t * 256}", ("W", par, o, ks))
            for ks in range(2) for t in range(2)]
def rdX(par):
    return [(f"ds_read_b128 {XF(par, n, ks)}, v{vXr + (n >> 2) * 2 + ks} offset:{((n >> 1) & 1) * REG + par * 4096 + (n & 1) * 2048} ;R X{par}", ("X", par))
            for n in range(8) for ks in range(2)]
def dmaW(par, p, t2=False):
    return [f"buffer_load_dwordx4 v{(vWG if p < 2 and t2 else vWA) + (j >> 1)}, {sr(SW[(p & 2) + (j & 1)], 4)}, s{sWa if p < 2 else sWb} offen offset:{j * 1024} lds ;D P{p}{par}" for j in range(4)]
def dmaX(par):
    return [f"buffer_load_dwordx4 v{vXo + j}, {sr(SX, 4)}, s{sXs} offen offset:{j * 1024} lds ;D X{par}" for j in range(4)]
def m0p(i): return f"s_add_u32 m0, s{sWreg}, {i * 4096}"
def store(src, c, m, imm, srd=SWS, pol="sc1"): return f"buffer_store_dwordx4 {src}, v{vSt}, {sr(srd, 4)}, s{sSt + c * 4 + m} offen offset:{imm} {pol}"
def stash_store(k, pol):
    a, c, m = k >> 3, k & 1, (k >> 1) & 3
    return store(ar(STASH(a, c, m), 4), c, m, (1 + a) * 1024, SWS, pol)
POLL = f"buffer_load_dword v{vPoll}, v{vPoll+1}, {sr(SDBG, 4)}, 0 offen sc1"
def PF(k): return f"buffer_load_dword v{vT+7}, v{vPf}, {sr(SPF, 4)}, s{sPf} offen offset:{128 * k}"
OPT = {}
DG = [[33, 39, 45, 51], [57, 63, 69, 75], [97, 101, 105, 109], [113, 117, 121, 125]]
XG = [3, 9, 15, 21]
def vm_plan(par, t2=False):
    fv, fx = {}, {}
    for g, d in zip(XG, dmaX(par)): fv.setdefault(g, []).append(d)
    fx[XG[0] - 1] = [m0p(8 + par)]
    fx[XG[3] + 1] = [f"s_add_u32 s{sXs}, s{sXs}, 128"]
    for p in range(4):
        for g, d in zip(DG[p], dmaW(par, p, t2)): fv.setdefault(g, []).append(d)
        fx[DG[p][0] - 3] = [m0p(wpiece(par, p))]
        r = sWa if p < 2 else sWb
        fx.setdefault(DG[p][3] + (1 if p != 2 else 2), []).append(f"s_add_u32 s{r}, s{r}, {32 * (3584 if p < 2 and t2 else 8192)}")
    return fv, fx
def canon(par):
    fv, _ = vm_plan(par)
    return [(l.split(";D ")[1].split()[0] if ";D " in l else "-") for g in sorted(fv) for l in fv[g]]

def cvt(d, a, b): return f"v_cvt_pk_bf16_f32 v{d}, v{a}, v{b}"
def packA(A, B, g): return [(g, cvt(A, A, A + 1), 1), (g, cvt(A + 1, A + 2, A + 3), 1), (g, cvt(A + 2, B, B + 1), 1), (g, cvt(A + 3, B + 2, B + 3), 1)]
def packB(A, B, g): return [(g, cvt(B + 3, B + 2, B + 3), 1), (g, cvt(B + 2, B, B + 1), 1), (g, cvt(B, A, A + 1), 1), (g, cvt(B + 1, A + 2, A + 3), 1)]
def packTo(D, A, B, g): return [(g, cvt(D, A, A + 1), 1), (g, cvt(D + 1, A + 2, A + 3), 1), (g, cvt(D + 2, B, B + 1), 1), (g, cvt(D + 3, B + 2, B + 3), 1)]
def toStash(S, A, g): return [(g, f"v_accvgpr_write_b32 a{S + r}, v{A + r}", 1) for r in range(4)]
def fromAcc(D, n, g): return [(g, f"v_accvgpr_read_b32 v{D + r}, a{4 * n + r}", 1) for r in range(4)]

def ln2(a, R, X, T, s0):
    def both(f):
        for k in range(2): a(f(R + 4 * k, X + 8 * k, T + 3 * k))
    def wsum(off):
        for d in ("quad_perm:[1,0,3,2]", "quad_perm:[2,3,0,1]", "row_half_mirror", "row_mirror"):
            a("s_nop 0")
            both(lambda R, X, T: f"v_add_f32_dpp v{T+off}, v{T+off}, v{T+off} {d} row_mask:0xf bank_mask:0xf")
        for sw in ("16", "32"):
            both(lambda R, X, T: f"v_mov_b32 v{T+1}, v{T+off}")
            a("s_nop 0")
            both(lambda R, X, T: f"v_permlane{sw}_swap_b32 v{T+off}, v{T+1}")
            both(lambda R, X, T: f"v_add_f32 v{T+off}, v{T+off}, v{T+1}")
    def rnd(off):
        both(lambda R, X, T: f"v_cvt_pk_bf16_f32 v{T+off}, v{T+off}, v{T+off}")
        both(lambda R, X, T: f"v_lshlrev_b32 v{T+off}, 16, v{T+off}")
    def unpack():
        for i in range(4):
            both(lambda R, X, T: f"v_lshlrev_b32 v{X+2*i}, 16, v{R+i}\nv_and_b32 v{X+2*i+1}, 0xffff0000, v{R+i}")
    unpack()
    both(lambda R, X, T: f"v_add_f32 v{T}, v{X}, v{X+1}")
    for i in range(2, 8): both(lambda R, X, T: f"v_add_f32 v{T}, v{T}, v{X+i}")
    wsum(0)
    both(lambda R, X, T: f"v_mul_f32 v{T}, 0x{f32hex(1.0/448)}, v{T}")
    both(lambda R, X, T: f"v_sub_f32 v{T+1}, v{X}, v{T}\nv_mul_f32 v{T+2}, v{T+1}, v{T+1}")
    for i in range(1, 8): both(lambda R, X, T: f"v_sub_f32 v{T+1}, v{X+i}, v{T}\nv_fmac_f32 v{T+2}, v{T+1}, v{T+1}")
    both(lambda R, X, T: f"v_cndmask_b32 v{T+2}, 0, v{T+2}, vcc")
    wsum(2)
    both(lambda R, X, T: f"v_mul_f32 v{T+2}, 0x{f32hex(1.0/448)}, v{T+2}")
    rnd(0); rnd(2)
    both(lambda R, X, T: f"v_add_f32 v{T+2}, 0x{f32hex(1e-5)}, v{T+2}")
    rnd(2)
    both(lambda R, X, T: f"v_sqrt_f32 v{T+2}, v{T+2}")
    a("s_nop 0")
    rnd(2)
    both(lambda R, X, T: f"v_rcp_f32 v{T+2}, v{T+2}")
    for i in range(8): both(lambda R, X, T: f"v_sub_f32 v{X+i}, v{X+i}, v{T}")
    both(lambda R, X, T: f"v_mul_f32 v{T+2}, 0x{f32hex(QSCALE)}, v{T+2}")
    for i in range(4): both(lambda R, X, T: cvt(R + i, X + 2 * i, X + 2 * i + 1))
    unpack()
    for i in range(8): both(lambda R, X, T: f"v_mul_f32 v{X+i}, v{X+i}, v{T+2}")
    for i in range(4): both(lambda R, X, T: cvt(R + i, X + 2 * i, X + 2 * i + 1))

def srd(d, lo, off, size):
    r = [f"s_add_u32 s{d}, s{lo}, s{off}", f"s_addc_u32 s{d+1}, s{lo+1}, 0"] if off is not None else [f"s_mov_b32 s{d}, s{lo}", f"s_mov_b32 s{d+1}, s{lo+1}"]
    return r + [size.replace("@", f"s{d+2}"), f"s_mov_b32 s{d+3}, 0x20000"]

def back1k(d): return [f"s_sub_u32 s{d}, s{d}, 1024", f"s_subb_u32 s{d+1}, s{d+1}, 0"]

class P1:
    def __init__(s, a, N, opt):
        s.a, s.N, s.opt = a, N, opt
        OPT.clear(); OPT.update(opt)
        s.sch = Sched(a)
        s.pol = opt.get("kvpol", "sc1")
    def stamp(s, i, pst=False):
        if s.opt.get("stamp") and bool(s.opt.get("pst")) == pst: s.a(f"s_memtime s[{sTm + 2 + 2 * i}:{sTm + 3 + 2 * i}]")
    def stage(s, par, swap=False, first=False, valu=[], stores={}, dma=1, nxt=True, seed=False, carry=False, xfv={}, xfx={}, scal=[]):
        sch = s.sch
        sch.reset([])
        if seed: sch.vmq = canon(par) + canon(par ^ 1)
        mf = []
        for o in range(8):
            for n in range(8):
                for ks in range(2):
                    A, B = (XF(par, n, ks), WF(o, ks)) if swap else (WF(o, ks), XF(par, n, ks))
                    c = "0" if first and ks == 0 else accs(o, n)
                    mf.append((f"v_mfma_f32_16x16x32_bf16 {accs(o, n)}, {A}, {B}, {c}", ("W", par, o, ks)))
        fv, fx = vm_plan(par, dma == 2) if dma else ({}, {})
        for g, l in stores.items(): fv.setdefault(g, []).append(l)
        for g, l in xfv.items(): fv.setdefault(g, []).extend(l)
        for g, l in xfx.items(): fx.setdefault(g, []).extend(l)
        reads = {}
        for o in range(8 if nxt else 6):
            pp, oo = (par, o + 2) if o < 6 else (par ^ 1, o - 6)
            for k, r in enumerate(rdW(pp, oo)): reads[16 * o + 2 + 2 * k] = [r]
            if oo % 4 == 0:
                fx.setdefault(16 * o - 1, []).insert(0, "s_waitcnt lgkmcnt(0)")
                fx.setdefault(16 * o, []).insert(0, f"s_waitcnt vmcnt(@VT:P{oo >> 1}{pp}@)")
                fx.setdefault(16 * o + 4, []).insert(0, f"s_waitcnt vmcnt(@VT:P{(oo >> 1) + 1}{pp}@)")
        if nxt:
            fx.setdefault(58, []).append(f"s_waitcnt vmcnt(@VT:X{par ^ 1}@)")
            fx.setdefault(59, []).append("s_barrier")
            for k, r in enumerate(rdX(par ^ 1)): reads[61 + 2 * k if k < 12 else 99 + 4 * (k - 12)] = [r]
            fx.setdefault(123, []).append("s_waitcnt lgkmcnt(0)")
            fx.setdefault(124, []).append("s_barrier")
        if s.opt.get("stamp") and nxt:
            fx.setdefault(1, []).append("s_memtime s[52:53]")
            fv.setdefault(119, []).append(f"v_cmp_eq_u32 vcc, s{sStg}, v1")
            fv.setdefault(124, []).append(f"v_mov_b32 v7, s52")
            fv.setdefault(126, []).append(f"v_cndmask_b32 v6, v6, v7, vcc")
        r = sch.phase(mf, reads, valu, scal=list(scal) + [(100, f"s_add_u32 s{sStg}, s{sStg}, 1")], fixed=fx, fixedv=fv, carry=carry)
        if s.opt.get("verbose"): print("stage over", sch.over, "left", len(r or []))
        return r
    def prologue(s):
        a, N = s.a, s.N
        a(f"""
        s_load_dwordx16 s[40:55], s[0:1], 0
        s_load_dwordx8 s[56:63], s[0:1], 64
        s_load_dwordx2 s[64:65], s[0:1], 96
        v_lshrrev_b32 v1, 6, v0
        s_and_b32 s{sH}, s2, 15
        v_readfirstlane_b32 s{sW}, v1
        v_and_b32 v1, 63, v0
        s_lshr_b32 s{sB}, s2, 4
        v_lshlrev_b32 v{vSt}, 4, v1
        s_mul_i32 s{sWreg}, s{sW}, {REG}
        s_lshl_b32 s{t0}, s{sB}, 4
        s_add_u32 s{t0}, s{t0}, s{sH}
        s_lshl_b32 s{t0}, s{t0}, 2
        s_add_u32 s{t0}, s{t0}, s{sW}
        s_mul_i32 s{t1}, s{t0}, {2*896}
        s_lshl_b32 s{t3}, s{t0}, 12
        v_cmp_gt_u32 vcc, 56, v1
        v_mov_b32 v{vT}, 0x7fffff00
        ; X voffs
        v_lshrrev_b32 v{vT+1}, 3, v1
        s_lshl_b32 s{t2}, s{sW}, 5
        v_cndmask_b32 v22, v{vT}, v{vSt}, vcc
        v_add_u32 v{vT+1}, s{t2}, v{vT+1}
        v_lshlrev_b32 v{vT+1}, 11, v{vT+1}
        v_lshrrev_b32 v{vT+2}, 4, v1         ; g
        v_and_b32 v{vT+3}, 7, v1
        v_xor_b32 v{vT+3}, v{vT+3}, v{vT+2}
        v_lshl_add_u32 v{vXo}, v{vT+3}, 4, v{vT+1}
        v_xor_b32 v{vT+3}, 4, v{vT+3}
        v_lshl_add_u32 v{vXo+1}, v{vT+3}, 4, v{vT+1}
        v_add_u32 v{vXo+2}, {2*(16384-1024)}, v{vXo}
        v_add_u32 v{vXo+1}, {16384-1024}, v{vXo+1}
        v_add_u32 v{vXo+3}, {2*(16384-1024)}, v{vXo+1}
        ; W voffs
        v_lshrrev_b32 v{vT+4}, 5, v1
        v_lshlrev_b32 v{vT+4}, 1, v{vT+4}
        v_and_b32 v{vT+3}, 3, v1
        v_xor_b32 v{vT+4}, v{vT+4}, v{vT+3}
        v_lshlrev_b32 v{vWG}, 4, v{vT+4}     ; chunk*16
        v_lshrrev_b32 v{vT+1}, 2, v1
        v_lshl_add_u32 v{vWA}, v{vT+1}, 13, v{vWG}
        """)
        a(f"v_add_u32 v{vWA+1}, {16*8192-2048}, v{vWA}")
        pre, post, post2 = s.pf_first()
        a(pre)
        a(f"""
        s_lshl_b32 s{sXs}, s{sB}, 18
        s_mov_b32 s{sWa}, 0
        s_mov_b32 s{sWb}, 0
        s_lshl_b32 s{t0}, s{sH}, 9
        s_and_b32 s{t2}, s{sW}, 1
        s_lshl_b32 s{t2}, s{t2}, 8
        s_add_u32 s{t0}, s{t0}, s{t2}
        s_waitcnt lgkmcnt(0)
        """)
        s.stamp(0, True)
        pf0 = s.opt.get("pf0", 2)
        a(post if pf0 > 0 else post.split("buffer")[0])
        a.ext(srd(STMP, pX, None, f"s_mov_b32 @, {XN_BYTES}"))
        a.ext(srd(SX, pC, None, f"s_mov_b32 @, {2048*2048}"))
        a(f"buffer_load_dwordx4 v[32:35], v22, {sr(STMP,4)}, s{t1} offen")
        a(f"buffer_load_dwordx4 v[36:39], v22, {sr(STMP,4)}, s{t1} offen offset:896")
        s.npf = 0
        if pf0 == 2: a(post2); s.npf = 1
        a(f"s_cmp_lt_u32 s{sW}, 2\ns_cselect_b32 s52, s{pWUK}, s{pWUV}\ns_cselect_b32 s53, s{pWUK+1}, s{pWUV+1}")
        for p in range(4):
            a.ext(srd(SW[p], 52, t0, f"s_sub_u32 @, {1024*8192 + (p & 1) * 1024}, s{t0}"))
            if p & 1: a.ext(back1k(SW[p]))
            if p < 3: a(f"s_add_u32 s{t0}, s{t0}, 64")
        if s.opt.get("now"):
            for p in range(4): a(f"s_mov_b32 s{SW[p]+2}, 0")
        if s.opt.get("nox"): a(f"s_mov_b32 s{SX+2}, 0")
        for par in range(2):
            fv, fx = vm_plan(par)
            for g in range(128):
                for t in fx.get(g, []): a(t)
                if fx.get(g) and "m0" in fx[g][-1]: a("s_nop 0")
                for t in fv.get(g, []): a(t)
        s.stamp(1, True)
        s.npf2 = 0
        if pf0 in (-1, 3): a(post2); s.npf2 = 1
        a.ext(srd(SWS, pWS, None, f"s_mov_b32 @, {WS_BYTES}"))
        a.ext(srd(SDBG, pDBG, None, f"s_mov_b32 @, 0"))
        s.pf_setup()
        a(f"""
        s_lshl_b32 s{t0}, s{sH}, 21
        s_lshl_b32 s{t1}, s{sB}, 17
        s_add_u32 s{t0}, s{t0}, s{t1}
        s_add_u32 s{t0}, s{t0}, {KV_OFF}
        s_lshl_b32 s{t1}, s{sW}, 12          ; K: 4w KB
        s_lshl_b32 s{t2}, s{sW}, 13          ; V: 16K + 8(w-2) KB
        s_cmp_lt_u32 s{sW}, 2
        s_cselect_b32 s{t1}, s{t1}, s{t2}
        s_cselect_b32 s{t2}, 2, 1
        s_lshl_b32 s{t2}, s{t2}, 12
        s_add_u32 s{sSt}, s{t0}, s{t1}
        s_add_u32 s{sSt+4}, s{sSt}, s{t2}
        """)
        for m in range(1, 4):
            a(f"s_add_u32 s{sSt+m}, s{sSt}, {m*32768}\ns_add_u32 s{sSt+4+m}, s{sSt+4}, {m*32768}")
        a(f"""
        v_and_b32 v{vT}, 15, v1
        v_lshrrev_b32 v{vT+1}, 1, v{vT}
        v_xor_b32 v{vT+1}, v{vT+1}, v{vT+2}
        v_lshlrev_b32 v{vT}, 7, v{vT}
        v_add_u32 v{vT}, 32768, v{vT}
        v_lshl_add_u32 v{vXr}, v{vT+1}, 4, v{vT}
        v_xor_b32 v{vT+1}, 4, v{vT+1}
        v_lshl_add_u32 v{vXr+1}, v{vT+1}, 4, v{vT}
        v_add_u32 v{vXr+2}, {2*REG}, v{vXr}
        v_add_u32 v{vXr+3}, {2*REG}, v{vXr+1}
        v_bfe_u32 v{vT}, v1, 2, 2
        v_and_b32 v{vT+1}, 1, v{vT+2}
        v_lshl_add_u32 v{vT}, v{vT+1}, 3, v{vT}
        v_lshlrev_b32 v{vT}, 6, v{vT}
        v_lshl_add_u32 v{vT}, v{vT+3}, 3, v{vT}
        v_lshrrev_b32 v{vT+4}, 5, v1
        v_lshl_add_u32 v{vT}, v{vT+4}, 11, v{vT}
        v_add_u32 v{vT}, s{sWreg}, v{vT}
        v_lshl_add_u32 v{vWr}, v{vT+1}, 5, v{vT}
        v_xor_b32 v{vWr+1}, 32, v{vWr}
        s_mov_b32 s{sStg}, 0
        v_lshrrev_b32 v{vT+1}, 2, v1
        v_mul_u32_u24 v{vT+1}, 3584, v{vT+1}
        v_add_u32 v{vWG}, v{vT+1}, v{vWG}
        v_add_u32 v{vWG+1}, {16*3584-2048}, v{vWG}
        s_lshl_b32 s{t0}, 1, s{sH}
        v_mov_b32 v{vFd}, s{t0}
        s_lshl_b32 s{t0}, s{sB}, 2
        v_lshlrev_b32 v{vFo}, 10, v0
        v_add_u32 v{vFo}, s{t0}, v{vFo}
        s_and_b32 s{sFlagStg}, s{sB}, 7
        s_add_u32 s{sFlagStg}, s{sFlagStg}, 2
        """)
        for r in range(4): a(f"v_accvgpr_write_b32 a{192+r}, 0")
        a("s_nop 1")
        Z = lambda d: a(f"v_mfma_f32_32x32x16_bf16 {d}, a[192:195], a[192:195], 0")
        for r in range(64, 256, 16): Z(vr(r, 16))
        Z(ar(0, 16)); Z(ar(16, 16))
        n2 = len(canon(0)) + len(canon(1)) + s.npf + s.npf2
        a(f"s_waitcnt vmcnt({n2})")
        s.stamp(2, True)
        ln2(a, 32, 40, vT, t0)
        s.stamp(3, True)
        a(f"buffer_store_dwordx4 v[32:35], v22, {sr(SWS,4)}, s{t3} offen sc1")
        a(f"buffer_store_dwordx4 v[36:39], v22, {sr(SWS,4)}, s{t3} offen offset:2048 sc1")
        Z(vr(48, 16))
        a(f"v_and_b32 v{vPoll+1}, 15, v1\nv_lshlrev_b32 v{vPoll+1}, 2, v{vPoll+1}")
        a(f"s_waitcnt vmcnt({2 + n2 - s.npf - 1 - max(i for i, x in enumerate(canon(0)) if x == 'P10')})\ns_barrier")
        s.stamp(0)
        for r in rdW(0, 0) + rdX(0) + rdW(0, 1): a(r[0])
        Z(vr(32, 16))
        a("s_waitcnt lgkmcnt(0)\ns_barrier\ns_nop 7")
    def pf_first(s):
        pre = f"""
        s_cmp_lt_u32 s{sW}, 2
        s_cselect_b32 s{t0}, 2, 1
        s_cselect_b32 s{t2}, 3, 1
        s_cselect_b32 s3, 13, 11
        v_lshrrev_b32 v{vT+5}, s{t0}, v1
        v_and_b32 v{vT+6}, s{t2}, v1
        v_lshlrev_b32 v{vT+6}, 7, v{vT+6}
        v_lshlrev_b32 v{vPf}, s3, v{vT+5}
        v_add_u32 v{vPf}, v{vPf}, v{vT+6}
        s_lshl_b32 s{SPF+2}, s{t0}, 22
        s_mov_b32 s{SPF+3}, 0x20000
        s_lshl_b32 s{sPf}, s{sB}, 16           ; W: 8b rows
        s_lshl_b32 s{t0}, s{sH}, 9
        s_add_u32 s{sPf}, s{sPf}, s{t0}
        s_lshl_b32 s{t0}, s{sB}, 1
        s_lshr_b32 s{t2}, s{sH}, 3
        s_add_u32 s{t0}, s{t0}, s{t2}
        s_lshl_b32 s{t0}, s{t0}, 1
        s_add_u32 s{t0}, s{t0}, s{sW}
        s_sub_u32 s{t0}, s{t0}, 2
        s_lshl_b32 s{t0}, s{t0}, 16
        s_movk_i32 s{t2}, 256
        s_cmp_lt_u32 s{sW}, 2
        s_cselect_b32 s{sPf}, s{sPf}, s{t0}
        s_cselect_b32 s{sPfStg}, {128*8192}, s{t2}
        s_cselect_b32 s{t0}, 32, 64
        v_cmp_gt_u32 s[{STMP}:{STMP+1}], s{t0}, v1
        s_add_u32 s{sPfStg}, s{sPfStg}, s{sPf}
        s_nop 0
        v_cndmask_b32 v{vPf}, v{vT}, v{vPf}, s[{STMP}:{STMP+1}]
        """
        post = f"""
        s_cmp_lt_u32 s{sW}, 2
        s_cselect_b32 s{SPF}, s{pWUK}, s{pC}
        s_cselect_b32 s{SPF+1}, s{pWUK+1}, s{pC+1}
        s_cmp_eq_u32 s{sW}, 1
        s_cselect_b32 s{SPF}, s{pWUV}, s{SPF}
        s_cselect_b32 s{SPF+1}, s{pWUV+1}, s{SPF+1}
        buffer_load_dword v{vT+7}, v{vPf}, {sr(SPF, 4)}, s{sPf} offen
        """
        post2 = f"buffer_load_dword v{vT+7}, v{vPf}, {sr(SPF, 4)}, s{sPfStg} offen"
        return pre, post, post2
    def pf_setup(s):
        a = s.a
        a(f"""
        s_and_b32 s{t0}, s{sB}, 7
        s_sub_u32 s{sPfStg}, s{t0}, 1
        s_max_i32 s{sPfStg}, s{sPfStg}, 0
        s_lshl_b32 s{t0}, s{t0}, 1
        s_lshr_b32 s{t1}, s{sB}, 3
        s_add_u32 s{t0}, s{t0}, s{t1}
        s_lshl_b32 s{t0}, s{t0}, 4
        s_add_u32 s{t0}, s{t0}, s{sH}
        s_lshl_b32 s{t0}, s{t0}, 2
        s_add_u32 s{t0}, s{t0}, s{sW}          ; u
        s_bitcmp1_b32 s{t0}, 0
        s_cselect_b32 s{SPF}, s{pWUV}, s{pWUK}
        s_cselect_b32 s{SPF+1}, s{pWUV+1}, s{pWUK+1}
        s_lshr_b32 s{sPf}, s{t0}, 1            ; (u-128)/2 + 64
        s_cmp_lt_u32 s{t0}, 128
        s_cselect_b32 s{SPF}, s{pC}, s{SPF}
        s_cselect_b32 s{SPF+1}, s{pC+1}, s{SPF+1}
        s_cselect_b32 s{sPf}, s{t0}, s{sPf}
        """)
        st = 512
        for p, n in ((pWQ, 112), (pWG, 49), (pWU, 49), (pWO, 112), (pWD, 49)):
            a(f"s_sub_u32 s{t1}, s{t0}, {st}\ns_cselect_b32 s{SPF}, s{SPF}, s{p}\ns_cselect_b32 s{SPF+1}, s{SPF+1}, s{p+1}\ns_cselect_b32 s{sPf}, s{sPf}, s{t1}")
            st += n
        a(f"""
        s_lshl_b32 s{sPf}, s{sPf}, 15
        s_add_u32 s{sPfz}, s{sPf}, 32768
        s_cmp_lt_u32 s{t0}, {st}
        s_cselect_b32 s{sPfz}, s{sPfz}, 0
        v_lshlrev_b32 v{vPf}, 9, v1
        """)
        if s.opt.get("nopf1"): a(f"s_mov_b32 s{sPfz}, 0")
    def lncheck(s, tag):
        a, N = s.a, s.N
        a(f"""
        v_cmp_ne_u32 vcc, 0xffff, v{vPoll}
        s_mov_b32 s{SX}, s{pWS}
        s_mov_b32 s{SX+1}, s{pWS+1}
        s_lshl_b32 s{sXs}, s{sB}, 18
        s_cbranch_vccz {N}_go{tag}
        s_mov_b32 s{t1}, {SPINMAX}
        s_mov_b32 s{SDBG+2}, 256
        """)
        a.label(f"{N}_spin{tag}")
        a(f"""
        s_sub_u32 s{t1}, s{t1}, 1
        s_cbranch_scc1 {N}_go{tag}
        {POLL}
        s_waitcnt vmcnt(0)
        v_cmp_ne_u32 vcc, 0xffff, v{vPoll}
        s_cbranch_vccnz {N}_spin{tag}
        """)
        a.label(f"{N}_go{tag}")
    def switch(s):
        J = lambda l: "\n".join(l)
        r = [f"s_lshl_b32 s{t0}, s{sH}, 8", f"s_lshl_b32 s{t1}, s{sW}, 6", f"s_add_u32 s{t0}, s{t0}, s{t1}",
             f"s_sub_u32 s{t1}, {448*3584}, s{t0}", f"s_add_u32 s{t2}, s{t1}, 1024",
             J([f"s_cmp_lt_u32 s{sH}, 14", f"s_cselect_b32 s{SW[0]+2}, s{t1}, 0", f"s_cselect_b32 s{SW[1]+2}, s{t2}, 0"]),
             J(srd(SW[0], pWG, t0, "")[:2]), J(srd(SW[1], pWU, t0, "")[:2]), J(back1k(SW[1])), f"s_mov_b32 s{sWa}, 0",
             f"s_lshl_b32 s{t0}, s{t0}, 1", J(srd(SW[2], pWQ, t0, "")[:2]), f"s_sub_u32 s{SW[2]+2}, {448*8192}, s{t0}",
             f"s_add_u32 s{t0}, s{t0}, 64", J(srd(SW[3], pWQ, t0, "")[:2]), J(back1k(SW[3])), f"s_sub_u32 s{SW[3]+2}, {448*8192+1024}, s{t0}",
             f"s_mov_b32 s{sWb}, 0"]
        return [(3, x) for x in r]
    def epiK(s):
        v = []
        for n in range(8): v += packA(acc(0, n), acc(1, n), 21 + 2 * n)
        for p in (1, 2):
            for n in range(8):
                v += packA(acc(2 * p, n), acc(2 * p + 1, n), 32 * p + 21 + 2 * n) + toStash(STASH(p - 1, n & 1, n >> 1), acc(2 * p, n), 0)
        st1 = [store(vr(acc(0, n), 4), n & 1, n >> 1, 0, SWS, s.pol) for n in range(8)]
        v2 = []
        for n in range(8):
            T = vT + 4 * (n & 1)
            v2 += fromAcc(T, n, 3) + packA(acc(6, n), T, 3)
        st2 = [store(vr(acc(6, n), 4), n & 1, n >> 1, 3072, SWS, s.pol) for n in range(8)]
        return v, st1, v2, st2
    def epiV(s):
        v = []
        for o in (0, 3, 1, 2, 4, 5, 6):
            for m in range(4):
                g = 16 * o + 4 * m + 8
                A, B = acc(o, 2 * m), acc(o, 2 * m + 1)
                if o in (0, 3): v += [x + ("hi",) for x in packB(A, B, g)]
                elif o == 4: v += packB(A, B, g)
                else: v += packA(A, B, g) + toStash(STASH((o & 3) - 1, o >> 2, m), A, g)
        st1 = [store(vr(acc(o, 2 * m + 1), 4), 0, m, o * 1024, SWS, s.pol) for o in (0, 3) for m in range(4)]
        v2 = []
        for m in range(4):
            v2 += fromAcc(vT, 2 * m, 3) + fromAcc(vT + 4, 2 * m + 1, 3) + packTo(acc(6, 4 + m), vT, vT + 4, 3)
        st2 = [store(vr(acc(4, 2 * m + 1), 4), 1, m, 0, SWS, s.pol) for m in range(4)] + \
              [store(vr(acc(6, 4 + m), 4), 1, m, 3072, SWS, s.pol) for m in range(4)]
        return v, st1, v2, st2
    def ffn(s, n, g, srdH):
        G = [acc(0, n) + r for r in range(4)] + [acc(1, n) + r for r in range(4)]
        U = [acc(2, n) + r for r in range(4)] + [acc(3, n) + r for r in range(4)]
        v = [(g, f"v_mul_f32 v{u}, v{u}, v{x}", 1) for u, x in zip(U, G)]
        v += [(g, f"v_mul_f32 v{x}, s{t3}, v{x}", 1) for x in G]
        v += [(g, f"v_exp_f32 v{x}, v{x}", 2) for x in G]
        v += [(g, f"v_add_f32 v{x}, 1.0, v{x}", 1) for x in G]
        v += [(g, f"v_rcp_f32 v{x}, v{x}", 2) for x in G]
        v += [(g, f"v_mul_f32 v{u}, v{u}, v{x}", 1) for u, x in zip(U, G)]
        v += packA(acc(2, n), acc(3, n), g)
        v += [(g, f"s_add_u32 s{t2}, s{t0}, {n * 56 * 1024}\nbuffer_store_dwordx4 {vr(acc(2, n), 4)}, v{vSt}, {sr(srdH, 4)}, s{t2} offen {s.pol}", 2)]
        return v
    def body(s):
        a, N = s.a, s.N
        s.prologue()
        a(f"s_cmp_lt_u32 s{sW}, 2\ns_cbranch_scc1 {N}_N0")
        SG = s.opt.get("SG", [42, 48, 54, 66, 78, 84, 90, 94])
        cx = {25: [f"s_cmp_eq_u32 s{sStg}, s{sFlagStg}"], 26: [f"s_cselect_b32 s{SDBG+2}, 256, 0"],
              78: [f"s_cmp_eq_u32 s{sStg}, s{sPfStg}"], 79: [f"s_cselect_b32 s{SPF+2}, s{sPfz}, 0"]}
        cv = {27: [f"buffer_atomic_or v{vFd}, v{vFo}, {sr(SDBG,4)}, 0 offen sc1"], **{85 + 2 * k: [PF(k)] for k in range(4)}}
        for tag, swap in (("V", True), ("N", False)):
            a(".p2align 6")
            a.label(f"{N}_{tag}0")
            s.stage(0, swap, seed=True, xfx={**cx, 28: [f"s_cmp_eq_u32 s{sStg}, 12"], 29: [f"s_cselect_b32 s{SDBG+2}, 256, 0"]}, xfv={**cv, 30: [POLL]})
            s.stage(1, swap, xfx={**cx, 127: [f"s_cmp_lg_u32 s{sStg}, 14"]}, xfv=cv)
            a(f"s_cbranch_scc1 {N}_{tag}0")
            a.label(f"{N}_last{tag}")
            s.lncheck(tag)
            s.stage(0, swap, dma=2, scal=s.switch())
            s.stamp(1)
            v, st1, v2, st2 = s.epiV() if swap else s.epiK()
            left = s.stage(1, swap, dma=2, valu=v, stores=dict(zip(SG, st1)), carry=True)
            s.stage(0, False, dma=2, first=True, valu=left + v2, stores=dict(zip(SG, st2)))
            s.stamp(2)
            if tag == "V": a(f"s_branch {N}_T2")
            a.label(f"{N}_end{tag}")
        a.label(f"{N}_T2")
        cnt = s.opt.get("stcnt", [4, 3, 3, 3, 3]); k = 0
        for i in range(5):
            g = [27, 81, 87, 93, 60, 48, 42, 54][:cnt[i]]
            s.stage((i + 1) & 1, dma=2 if i < 4 else 0, stores={x: stash_store(k + j, s.pol) for j, x in enumerate(g)})
            k += cnt[i]
        assert k == 16
    def paths(s):
        N = s.N
        return [[(N, f"{N}_V0")] + [(f"{N}_{t}0", f"{N}_last{t}")] * 7 + [(f"{N}_go{t}", f"{N}_end{t}"), (f"{N}_T2", f"{N}_last2")] for t in "VN"]

def gen_k1(name="proj_kernel", opt=None):
    opt = opt or {}
    a = Asm(); N = name
    P = P1(a, N, opt)
    a(f".p2align 8\n.globl {N}\n.type {N},@function")
    a.label(N)
    a(f"s_cmp_ge_u32 s2, 256\ns_cbranch_scc1 {N}_done")
    if opt.get("stamp"): a(f"s_memtime s[{sTm}:{sTm+1}]\ns_memrealtime s[{sTm+10}:{sTm+11}]")
    P.body()
    a.label(f"{N}_last2")
    P.stamp(3)
    a(f"""
    s_mul_i32 s{t0}, s{sB}, {8*56}
    s_lshl_b32 s{t1}, s{sH}, 2
    s_add_u32 s{t0}, s{t0}, s{t1}
    s_add_u32 s{t0}, s{t0}, s{sW}
    s_lshl_b32 s{t0}, s{t0}, 10
    s_add_u32 s{t0}, s{t0}, {H_OFF}
    s_lshl_b32 s{t1}, s{sH}, 20
    s_lshl_b32 s{t2}, s{sB}, 16
    s_add_u32 s{t1}, s{t1}, s{t2}
    s_lshl_b32 s{t2}, s{sW}, 11
    s_add_u32 s{t1}, s{t1}, s{t2}
    s_add_u32 s{t1}, s{t1}, {Q_OFF}
    s_mov_b32 s{t3}, 0x{f32hex(-16.0)}
    s_cmp_lt_u32 s{sH}, 14
    s_cselect_b32 s{STMP+2}, s{SWS+2}, 0
    s_mov_b32 s{STMP}, s{pWS}
    s_mov_b32 s{STMP+1}, s{pWS+1}
    """)
    def qst(n, p):
        return [(0, f"s_add_u32 s{t2}, s{t1}, {n * 8192}\nbuffer_store_dwordx4 {vr(acc(4 + 2 * p, n), 4)}, v{vSt}, {sr(SWS, 4)}, s{t2} offen offset:{p * 1024} {P.pol}", 2)]
    v = P.ffn(0, 53, STMP) + P.ffn(1, 55, STMP)
    for n in range(8): v += packA(acc(4, n), acc(5, n), 85 + 2 * n) + qst(n, 0)
    for n in range(2, 4): v += P.ffn(n, 67, STMP)
    for n in range(8):
        T = vT + 4 * (n & 1)
        v += fromAcc(T, n, 200) + packA(acc(6, n), T, 200) + qst(n, 1)
    for n in range(4, 8): v += P.ffn(n, 67, STMP)
    P.stage(0, False, valu=v, dma=0, nxt=False)
    a.label(f"{N}_fin")
    if opt.get("stamp"):
        a(f"""
        s_memtime s[52:53]
        s_lshl_b32 s{t2}, s2, 2
        s_add_u32 s{t2}, s{t2}, s{sW}
        s_lshl_b32 s{t2}, s{t2}, 8
        s_add_u32 s{t2}, s{t2}, {STAMP_OFF + 262144}
        v_subrev_u32 v22, s{sTm}, v6
        v_lshlrev_b32 v23, 2, v1
        buffer_store_dword v22, v23, {sr(SWS,4)}, s{t2} offen
        s_waitcnt vmcnt(0)
        s_memtime s[4:5]
        s_memrealtime s[6:7]
        s_waitcnt lgkmcnt(0)
        s_sub_u32 s{t0}, s4, s{sTm}
        s_sub_u32 s{t1}, s6, s{sTm+10}
        v_mov_b32 v24, s{t0}
        v_mov_b32 v25, s{t1}
        v_mov_b32 v26, s{sTm+10}
        v_mov_b32 v27, s6
        s_lshl_b32 s{t2}, s2, 6
        s_lshl_b32 s{t3}, s{sW}, 4
        s_add_u32 s{t2}, s{t2}, s{t3}
        s_add_u32 s{t2}, s{t2}, {STAMP_OFF}
        v_mov_b32 v28, 0
        s_mov_b64 exec, 1
        buffer_store_dwordx4 v[24:27], v28, {sr(SWS,4)}, s{t2} offen
        """)
        for i in range(4): a(f"s_sub_u32 s{t0}, s{sTm+2+2*i}, s{sTm}\nv_mov_b32 v{4+i}, s{t0}")
        a(f"s_add_u32 s{t2}, s{t2}, 65536\nbuffer_store_dwordx4 v[4:7], v28, {sr(SWS,4)}, s{t2} offen")
        a(f"s_sub_u32 s{t0}, s52, s{sTm}\nv_mov_b32 v8, s{t0}\ns_add_u32 s{t2}, s{t2}, 65536\nbuffer_store_dword v8, v28, {sr(SWS,4)}, s{t2} offen")
    a.label(f"{N}_done")
    a("s_endpgm")
    import trace
    for p in P.paths(): print("trace bad:", trace.check(a.text(), p + [(f"{N}_last2", f"{N}_fin")]))
    return a.text(), kernel_desc(N, 512, 102, 256), f"; @launch kernel={N} grid=(256,1,1) block=(256,1,1) lds=163840"
```

```python
from asmlib import *
from layout import *
from k0 import f32hex
from k1n import pX, pWO, pWD, pOUT, pWS, sW, sH, sB, t0, t1, t2, t3, SWS, sTm

SLOT = 32768
RING = 5 * SLOT
THR = 2.0 ** 16
NEG = -1.0e30
vDma, vF0, vL16, vRd = 2, 3, 4, 5
vWo = 6
vTl, vTc = 10, 14
vT0, vT1 = 18, 19
vL = 20
vLs = 24
vT2, vT3 = 26, 27
vPm = 28
vE = 32
def NEGM(qs): return 40 + 4 * qs
def CM(kt): return 48 + 4 * kt
def MBK(k, kt): return 56 + 8 * k + 4 * kt
def P(p, qs): return 72 + 8 * p + 4 * qs
def S(p, kt, qs): return 88 + 16 * p + 8 * kt + 4 * qs
vOut = 120
vG, vRs, vHp = 120, 124, 126
def OB(dk, qs): return 128 + (dk * 2 + qs) * 8
def O(dt, qs): return OB(dt >> 1, qs) + 4 * (dt & 1)
def Q(qs, dk): return ar((qs * 8 + dk) * 4, 4)
def F(f, half=None):
    b = 64 + 4 * (f % 16)
    return ar(b, 4) if half is None else ar(b + 2 * half, 2)
SG, SX2, SO = 4, 8, 12
sW4K = 67
sWrW, sWrap, sSrc, sStep, sHalf, sSrcEnd, sRd, sCnt = range(16, 24)
sSeg, sComb, sRet, sI, sN, sThr, sPart, sY = range(28, 36)
sSt0, sSt1, sMask, sSeen = range(36, 40)
sNx, sFl, sFlN, sFlIt, sKVh, sPoll, sLd, sHo, sHf, sSpin = 70, 73, 74, 75, 77, 78, 79, 80, 81, 82
STP = [42, 44, 46, 48, 52, 54, 56, 62]

def rdK(f): return (f"ds_read_b128 {F(f)}, v{vRd} offset:{16384 + f * 1024} ;R S@1:r", f)
def rdV(f): return (f"ds_read_b128 {F(f)}, v{vRd} offset:{(f - 16) * 1024} ;R S@0:r", f)
def rdKV(f): return rdK(f) if f < 16 else rdV(f)
def rdW(f):
    mt, dk = (f >> 3) & 3, f & 7
    return [(f"ds_read_b64_tr_b16 {F(f, t)}, v{vTc + mt} offset:{(32 * dk + 16 * t) * 128}", 100 + f) for t in range(2)]
def mm(d, A, B, c): return f"v_mfma_f32_16x16x32_bf16 {vr(d,4)}, {A}, {B}, {c}"
def qk(pn, qss, cinit):
    m = []
    for kt in range(2):
        for qs in qss:
            for dk in range(8):
                d = S(pn, kt, qs)
                m.append((mm(d, F(kt * 8 + dk), Q(qs, dk), cinit(kt, qs) if dk == 0 else vr(d, 4)), kt * 8 + dk))
    return m
def pv(p, qss):
    return [(mm(O(dt, qs), F(16 + dt), vr(P(p, qs), 4), vr(O(dt, qs), 4)), 16 + dt) for dt in range(16) for qs in qss]
def expw(p, qs, g0=0):
    src = [S(p, kt, qs) + r for kt in range(2) for r in range(4)]
    ls = vLs + qs
    v = []
    for k in range(8):
        v.append((g0, f"v_exp_f32 v{vE + k}, v{src[k]}", 2))
        if k == 1: v.append((g0, f"v_add_f32 v{ls}, v{vE}, v{vE + 1}", 1))
        elif k > 1: v.append((g0, f"v_add_f32 v{ls}, v{ls}, v{vE + k}", 1))
    for r in range(4):
        v.append((g0, f"v_cvt_pk_bf16_f32 v{P(p, qs) + r}, v{vE + 2 * r}, v{vE + 2 * r + 1}", 1))
    return v
def check_ops(): return [(0, f"v_max_f32 v{vT0}, v{vLs}, v{vLs + 1}", 1), (0, f"v_cmp_lt_f32 vcc, s{sThr}, v{vT0}", 1)]
def lacc(qss): return [(0, f"v_add_f32 v{vL + qs}, v{vL + qs}, v{vLs + qs}", 1) for qs in qss]
def cm_ops(qs, k): return [(0, f"v_add_f32 v{CM(kt) + r}, v{NEGM(qs)}, v{MBK(k, kt) + r}", 1) for kt in range(2) for r in range(4)]
def dma(h, vb=vG, same=False):
    return [f"buffer_load_dwordx4 v{vb + (0 if same else j)}, {sr(SG, 4)}, s{sSrc if h == 0 else t3} offen offset:{j * 1024} sc1 lds ;D S@{h}" for j in range(4)]
def m0set(h):
    return [f"s_mov_b32 m0, s{sWrW}"] if h == 0 else [f"s_add_u32 m0, s{sWrW}, 16384", f"s_add_u32 s{t3}, s{sSrc}, s{sHalf}"]
def adv_wr():
    return [f"s_add_u32 s{sWrW}, s{sWrW}, {SLOT}", f"s_cmp_eq_u32 s{sWrW}, s{sWrap}", f"s_cselect_b32 s{sWrW}, s{sW4K}, s{sWrW} ;AW",
            f"s_add_u32 s{sSrc}, s{sSrc}, s{sStep}"]
def adv_rd(): return [f"s_add_u32 s{sRd}, s{sRd}, {SLOT}", f"s_cmp_eq_u32 s{sRd}, {RING}", f"s_cselect_b32 s{sRd}, 0, s{sRd} ;AS"]
UPD = f"v_add_u32 v{vRd}, s{sRd}, v{vL16} ;AR r"
UPDW = [f"v_add_u32 v{vTc + k}, s{sRd}, v{vTl + k} ;AR {k}" for k in range(4)]
FLAG = f"buffer_store_dword v{vWo + 1}, v{vF0}, {sr(SWS, 4)}, s{sFl} offen sc1 ;FLAG"
A_ENTRY = list(range(10))
B_ENTRY = list(range(16, 26))

class P2:
    def __init__(s, a, N, opt, sch=None):
        s.a, s.N, s.opt = a, N, opt
        s.sch = sch or Sched(a)
        s.sites = {0: [], 1: []}
    def stamp(s, i):
        if s.opt.get("stamp"): s.a(f"s_memtime s[{STP[i]}:{STP[i]+1}]")
    def branch_check(s, p, tag):
        s.sites[p].append(tag)
        s.a(f"s_cbranch_vccnz {s.N}_rare{p}")
        s.a.label(f"{s.N}_ret_{tag}")
    def phaseA(s, p, tag, cinit=None, half=False, expq=1, extra=[], post=[]):
        cinit = cinit or (lambda kt, qs: vr(NEGM(qs), 4))
        s.sch.reset(A_ENTRY)
        mf = qk(p ^ 1, [1] if half else [0, 1], cinit)
        st = 1 if half else 2
        reads = {st * k: [rdKV(10 + k)] for k in range(16)}
        valu = (expw(p, expq) if expq is not None else []) + check_ops() + extra
        dg = [1, 4, 7, 10] if half else [19, 21, 23, 25]
        s.sch.phase(mf, reads, valu, scal=[(0, f"s_mov_b32 s{sRet}, {len(s.sites[p])}")] + [(dg[3], t) for t in adv_wr()],
                    fixed={dg[0] - 1: m0set(1)}, fixedv={g: [d] for g, d in zip(dg, dma(1))})
        s.branch_check(p, tag)
        s.a.ext(post)
    def phaseB(s, p, half=False, accq=(0, 1), expq=0, extra=[], nxt="K", vm=16, post=[], flag=False):
        s.sch.reset(B_ENTRY)
        mf = pv(p, [1] if half else [0, 1])
        st = 1 if half else 2
        reads = {st * k: [rdV(26 + k)] for k in range(6)}
        gb = 5 * st + 1 if not half else 6
        for k in range(10):
            g = st * (6 + k)
            if nxt == "K": reads[g] = [rdK(k)]
            elif nxt == "V": reads[g] = [(rdV(16 + k)[0], 216 + k)]
        valu = lacc(accq) + (expw(p ^ 1, expq, 3 if expq == 1 else 0) if expq is not None else []) + extra
        if nxt is None: valu += [(gb, t, 1) for t in UPDW]
        dg = [8, 10, 12, 14] if half else [13, 17, 21, 25]
        fv = {g: [d] for g, d in zip(dg, dma(0))}
        fv[5 if half else gb] = [UPD]
        fx = {gb: [f"s_waitcnt vmcnt({vm})", "s_barrier"], dg[0] - 1: m0set(0)}
        if flag: fv[29] = [FLAG]; fx[30] = [f"s_mov_b32 s{sFl}, {NULLO}"]
        for k, t in enumerate(adv_rd()): fx[2 * k] = [t]
        s.sch.phase(mf, reads, valu, scal=[(26, t) for t in post], fixed=fx, fixedv=fv)
    def xl(s, m, op):
        a = s.a
        for sw in ("32", "16"):
            a(f"v_mov_b32 v{vT2}, v{m}\nv_mov_b32 v{vT3}, v{m+1}\ns_nop 0")
            a(f"v_permlane{sw}_swap_b32 v{m}, v{vT2}\nv_permlane{sw}_swap_b32 v{m+1}, v{vT3}")
            a(f"v_{op}_f32 v{m}, v{m}, v{vT2}\nv_{op}_f32 v{m+1}, v{m+1}, v{vT3}")
    def rowmax(s, p):
        a = s.a
        for qs in range(2):
            x = [S(p, kt, qs) + r for kt in range(2) for r in range(4)]
            m = vT0 + qs
            a(f"v_max3_f32 v{m}, v{x[0]}, v{x[1]}, v{x[2]}")
            a(f"v_max3_f32 v{m}, v{m}, v{x[3]}, v{x[4]}")
            a(f"v_max3_f32 v{m}, v{m}, v{x[5]}, v{x[6]}")
            a(f"v_max_f32 v{m}, v{m}, v{x[7]}")
        s.xl(vT0, "max")
    def plain(s, v):
        pt = False
        for x in v:
            if pt and x[2] == 1: s.a("s_nop 0")
            s.a(x[1]); pt = x[2] == 2
    def expw_plain(s, p, qs):
        v = expw(p, qs)
        s.plain([x for x in v if x[2] == 2] + [x for x in v if x[2] == 1])
    def cvt_block(s, b):
        for r in range(4): s.a(f"v_cvt_pk_bf16_f32 v{b+r}, v{b+2*r}, v{b+2*r+1}")
    def zeroO(s, k):
        s.a(f"v_mfma_f32_32x32x16_bf16 {vr(128 + 16 * k, 16)}, {vr(P(1, 1), 4)}, {vr(P(1, 1), 4)}, 0")
    def stream_setup(s):
        ytab = s.opt.get("ytab") or [max(s.opt.get("Y0", 24) - 4 * i, 0) if i < 6 else 0 for i in range(8)]
        assert all(y % 2 == 0 and (y == 0 or y >= 4) for y in ytab) and ytab[7] == 0
        yt = sum((y // 2) << (4 * i) for i, y in enumerate(ytab))
        J = lambda *l: "\n".join(l)
        return [f"s_sub_u32 s{sI}, 15, s{sB}", f"s_min_u32 s{sI}, s{sI}, s{sB}", f"s_lshl_b32 s{sY}, s{sI}, 2", f"s_lshr_b32 s{sY}, {yt}, s{sY}",
                f"s_and_b32 s{sY}, s{sY}, 15", f"s_lshl_b32 s{sY}, s{sY}, 1", f"s_mul_i32 s{sKVh}, s{sH}, {KVS}", f"s_add_u32 s{sKVh}, s{sKVh}, {KV_OFF - 16384}",
                J(f"s_cmp_ge_u32 s{sB}, 8", f"s_cselect_b32 s{sN}, s{sY}, 0"), f"s_lshl_b32 s{sSrc}, s{sN}, 15", f"s_add_u32 s{sSrc}, s{sSrc}, s{sKVh}",
                f"s_add_u32 s{sWrW}, s{sW4K}, {4 * SLOT}", f"s_add_u32 s{sWrap}, s{sW4K}, {RING}", f"s_mov_b32 s{sStep}, {SLOT}", f"s_mov_b32 s{sHalf}, 16384",
                f"s_mov_b32 s{SG}, s{pWS}", f"s_mov_b32 s{SG+1}, s{pWS+1}", f"s_mov_b32 s{SG+2}, {WS_BYTES}", f"s_mov_b32 s{SG+3}, 0x20000"]
    def scal_setup(s):
        J = lambda *l: "\n".join(l)
        u0, u1 = sSt0, sSt1
        return [f"s_lshl_b32 s{u0}, s{sB}, 2", f"s_sub_u32 s{sN}, s{u0}, s{sN}", f"s_add_u32 s{sN}, s{sN}, 4",
                f"s_mov_b32 s{sSrcEnd}, -1", f"s_mov_b32 s{sRd}, {4 * SLOT}", f"s_mov_b32 s{sSeg}, 0", f"s_mov_b32 s{sSeen}, 0", f"s_mov_b32 s{sRet}, 0",
                f"s_mov_b32 s{sThr}, 0x{f32hex(s.opt.get('thr', THR))}", f"s_mov_b32 s{sMask}, 0xffff0000", f"s_min_u32 s{sComb}, s{sY}, 1",
                f"s_lshl_b32 s{u0}, s{sH}, 3", f"s_add_u32 s{u0}, s{u0}, s{sI}", f"s_lshl_b32 s{u0}, s{u0}, 2", f"s_add_u32 s{sPoll}, s{u0}, {F3_OFF}",
                f"s_add_u32 s{u0}, s{u0}, s{sW}", f"s_mul_i32 s{sPart}, s{u0}, {17*1024}", f"s_add_u32 s{sPart}, s{sPart}, {PART_OFF}",
                f"s_mov_b32 s{sFlN}, s{sPoll}",
                f"s_sub_u32 s{u0}, 15, s{sI}", f"s_lshl_b32 s{u1}, s{sH}, 4", f"s_add_u32 s{u1}, s{u1}, s{u0}", f"s_lshl_b32 s{u1}, s{u1}, 2",
                f"s_add_u32 s{u1}, s{u1}, s{sW}", f"s_lshl_b32 s{u1}, s{u1}, 14", f"s_add_u32 s{u1}, s{u1}, {Q_OFF}",
                f"s_lshl_b32 s{u0}, s{u0}, 4", f"s_add_u32 s{u0}, s{u0}, s{sH}", f"s_lshl_b32 s{u0}, s{u0}, 2", f"s_add_u32 s{u0}, s{u0}, {F1_OFF}",
                J(f"s_cmp_ge_u32 s{sB}, 8", f"s_cselect_b32 s{sLd}, s{sPart}, s{u1}", f"s_cselect_b32 s{sPoll}, s{sPoll}, s{u0}"),
                f"s_lshl_b32 s{u0}, s{sH}, 3", f"s_add_u32 s{u0}, s{u0}, s{sW}", f"s_mul_i32 s{u0}, s{u0}, 7", f"s_add_u32 s{u0}, s{u0}, s{sB}",
                f"s_lshl_b32 s{u0}, s{u0}, 13", f"s_add_u32 s{sHo}, s{u0}, {H_OFF}",
                f"s_lshl_b32 s{u0}, s{sH}, 3", f"s_add_u32 s{u0}, s{u0}, s{sB}", f"s_lshl_b32 s{u0}, s{u0}, 3", f"s_add_u32 s{u0}, s{u0}, {F1_OFF}",
                f"s_mul_i32 s{u1}, s{sB}, {256*896}",
                J(f"s_cmp_lt_u32 s{sB}, 7", f"s_cselect_b32 s{sHf}, s{u0}, {NULLO}", f"s_cselect_b32 s{sNx+2}, {256*896}, 0", f"s_cselect_b32 s{u1}, s{u1}, 0"),
                J(f"s_add_u32 s{sNx}, s{pWD}, s{u1}", f"s_addc_u32 s{sNx+1}, s{pWD+1}, 0")]
    def vec_setup(s):
        a = s.a
        a(f"""
        v_lshlrev_b32 v{vL16}, 4, v1
        v_cmp_eq_u32 vcc, 0, v0
        v_mov_b32 v{vF0}, 0x7fffff00
        v_lshrrev_b32 v{vT0}, 3, v0
        v_and_b32 v{vT1}, 7, v{vT0}
        v_and_b32 v{vT0}, 24, v{vT0}
        v_lshl_add_u32 v{vT0}, v{vT0}, 2, v{vT1}
        v_cndmask_b32 v{vF0}, v{vF0}, v0, vcc
        v_mul_u32_u24 v{vT0}, 896, v{vT0}
        v_bfe_u32 v{vT1}, v1, 1, 2
        v_lshrrev_b32 v{vT2}, 4, v1            ; g
        v_xor_b32 v{vT1}, v{vT1}, v{vT2}
        v_lshl_add_u32 v{vT0}, v{vT1}, 5, v{vT0}
        v_and_b32 v{vT1}, 1, v1
        v_lshl_add_u32 v{vWo}, v{vT1}, 4, v{vT0}
        """)
        a(UPD)
        for j in range(1, 4): a(f"v_add_u32 v{vWo+j}, {6144*j}, v{vWo}")
        for j in range(4): a(f"v_mov_b32 v{vG+j}, v{vDma}\nv_mov_b32 v{P(1,1)+j}, 0")
        a(f"""
        v_lshrrev_b32 v{vT0}, 2, v1
        v_lshlrev_b32 v{vT0}, 7, v{vT0}
        v_and_b32 v{vT1}, 3, v1
        v_lshl_add_u32 v{vT0}, v{vT1}, 3, v{vT0}
        v_bfe_u32 v{vT1}, v1, 3, 2
        """)
        for mt in range(4):
            s.zeroO(2 * mt)
            a(f"v_xor_b32 v{vT3}, {mt}, v{vT1}")
            a(f"v_lshl_add_u32 v{vTl+mt}, v{vT3}, 5, v{vT0}")
        a(f"""
        v_and_b32 v{vT0}, 15, v1
        s_lshl_b32 s{t0}, s{sW}, 4
        v_add_u32 v{vT0}, s{t0}, v{vT0}
        v_lshlrev_b32 v{vT2}, 2, v{vT2}
        v_sub_u32 v{vT0}, v{vT0}, v{vT2}
        v_mov_b32 v{vT1}, 0x{f32hex(NEG)}
        """)
        for k in range(2):
            for kt in range(2):
                s.zeroO(2 * (2 * k + kt) + 1)
                for r in range(4):
                    sp = t0 + 2 * (r & 1)
                    a(f"v_cmp_gt_i32 s[{sp}:{sp+1}], {32*k+16*kt+r}, v{vT0}")
                    if r & 1:
                        a("s_nop 0")
                        a(f"v_cndmask_b32 v{MBK(k,kt)+r-1}, 0, v{vT1}, s[{t0}:{t0+1}]")
                        a(f"v_cndmask_b32 v{MBK(k,kt)+r}, 0, v{vT1}, s[{t2}:{t2+1}]")
        a(f"s_cmp_eq_u32 s{sB}, 0\ns_cselect_b32 s{t0}, 1.0, 0")
        for r in range(8): a(f"v_mul_f32 v{CM(0)+r}, s{t0}, v{MBK(0,0)+r}")
    def standalone(s):
        a, N = s.a, s.N
        a(f"""
        s_load_dwordx16 s[40:55], s[0:1], 0
        s_load_dwordx8 s[56:63], s[0:1], 64
        s_load_dwordx2 s[64:65], s[0:1], 96
        v_lshrrev_b32 v1, 6, v0
        s_and_b32 s{sH}, s2, 15
        v_readfirstlane_b32 s{sW}, v1
        v_and_b32 v1, 63, v0
        s_lshr_b32 s{sB}, s2, 4
        s_lshl_b32 s{sW4K}, s{sW}, 12
        v_lshlrev_b32 v{vL16}, 4, v1
        v_add_u32 v{vDma}, s{sW4K}, v{vL16}
        s_waitcnt lgkmcnt(0)
        s_mov_b32 s{SWS}, s{pWS}
        s_mov_b32 s{SWS+1}, s{pWS+1}
        s_mov_b32 s{SWS+2}, {WS_BYTES}
        s_mov_b32 s{SWS+3}, 0x20000
        s_mov_b32 s{sFl}, {NULLO}
        """)
        a.ext(s.stream_setup())
        a.ext(m0set(1)); a.ext(dma(1, vDma, True)); a.ext(adv_wr())
        a(f"s_lshl_b32 s{t0}, s{sH}, 4\ns_add_u32 s{t0}, s{t0}, s{sB}\ns_lshl_b32 s{t0}, s{t0}, 2\ns_add_u32 s{t0}, s{t0}, s{sW}\ns_lshl_b32 s{t0}, s{t0}, 14\ns_add_u32 s{t0}, s{t0}, {Q_OFF}")
        for k in range(16):
            if k and k % 4 == 0: a(f"s_add_u32 s{t0}, s{t0}, 4096")
            a(f"buffer_load_dwordx4 {ar(4 * k, 4)}, v{vL16}, {sr(SWS,4)}, s{t0} offen offset:{(k & 3) * 1024}")
        for k in range(2):
            for h in range(2):
                a.ext(m0set(h)); a("s_nop 0"); a.ext(dma(h, vDma, True))
            a.ext(adv_wr())
        a.ext(m0set(0)); a("s_nop 0"); a.ext(dma(0, vDma, True))
        a.ext(s.scal_setup())
        s.vec_setup()
        a("s_waitcnt vmcnt(20)\ns_barrier")
        for f in A_ENTRY: a(rdK(f)[0])
    def wswitch(s):
        a = s.a
        a(f"""
        s_mul_i32 s{t0}, s{sH}, {256*896}
        s_add_u32 s{SG}, s{pWO}, s{t0}
        s_addc_u32 s{SG+1}, s{pWO+1}, 0
        s_mov_b32 s{SG+2}, {256*896}
        s_mov_b32 s{sSrc}, 0
        s_mov_b32 s{sStep}, 128
        s_mov_b32 s{sHalf}, {128*896}
        s_mov_b32 s{sSrcEnd}, -1
        """)
        for j in range(4): a(f"v_mov_b32 v{vG+j}, v{vWo+j}")
    def spin(s, tag, issue, test, lab=None):
        a, N = s.a, s.N
        a(f"s_mov_b32 s{sSpin}, {SPINMAX}")
        a.label(f"{N}_sp{tag}")
        a(f"s_sub_u32 s{sSpin}, s{sSpin}, 1\ns_cbranch_scc1 {N}_spx{tag}")
        a(issue); a("s_waitcnt vmcnt(0)"); a(test)
        a(f"s_cbranch_scc0 {N}_sp{tag}")
        a.label(f"{N}_spx{tag}")
    def body(s):
        a, N, sch, opt = s.a, s.N, s.sch, s.opt
        phaseA, phaseB, plain, stamp = s.phaseA, s.phaseB, s.plain, s.stamp
        masked_c = lambda mq: (lambda kt, qs: vr(CM(kt), 4) if qs == mq else vr(NEGM(qs), 4))
        stamp(0)
        a.label(f"{N}_pro")
        sch.reset(A_ENTRY)
        dg = [19, 21, 23, 25]
        sch.phase(qk(0, [0, 1], lambda kt, qs: vr(CM(kt), 4) if qs == 0 else "0"),
                  {2 * k: [rdK(10 + k)] for k in range(6)}, [(20, UPD, 1)],
                  scal=[(0, t) for t in adv_rd()] + [(dg[3], t) for t in adv_wr()],
                  fixed={dg[0] - 1: m0set(1)}, fixedv={g: [d] for g, d in zip(dg, dma(1))})
        a("s_waitcnt vmcnt(16)\ns_barrier")
        a.ext(m0set(0))
        for f in A_ENTRY: a(rdK(f)[0])
        a.ext(dma(0))
        s.rowmax(0)
        for qs in range(2):
            for kt in range(2):
                for r in range(4): a(f"v_sub_f32 v{S(0,kt,qs)+r}, v{S(0,kt,qs)+r}, v{vT0+qs}")
        s.expw_plain(0, 0)
        for qs in range(2):
            for r in range(4): a(f"v_sub_f32 v{NEGM(qs)+r}, 0, v{vT0+qs}")
            a(f"v_mov_b32 v{vL+qs}, 0")
        a(f"""
        s_lshr_b32 s{sCnt}, s{sN}, 1
        s_lshl_b32 s{t0}, s{sSeg}, 1
        s_add_u32 s{sCnt}, s{sCnt}, s{t0}
        s_sub_u32 s{sCnt}, s{sCnt}, 3
        s_cbranch_scc0 {N}_loop
        """)
        plain(cm_ops(0, 1))
        a(f"s_mov_b32 s{t1}, {NULLO}\ns_branch {N}_T1")
        a.label(f"{N}_proe")
        a(".p2align 6")
        a.label(f"{N}_loop")
        phaseA(0, "le", post=[f"s_cmp_eq_u32 s{sSrc}, s{sSrcEnd}", f"s_cbranch_scc1 {N}_sw0"])
        a.label(f"{N}_sw0r")
        phaseB(0, post=[f"s_sub_u32 s{sCnt}, s{sCnt}, 1"])
        a(f"s_cbranch_scc1 {N}_exit")
        a.label(f"{N}_lo")
        phaseA(1, "lo")
        phaseB(1, flag=True)
        a(f"s_branch {N}_loop")
        a.label(f"{N}_sw0")
        s.wswitch()
        a(f"s_branch {N}_sw0r")
        a.label(f"{N}_sw1")
        s.wswitch()
        a(f"s_branch {N}_sw1r")
        HPOLL = f"buffer_load_dwordx2 {vr(vHp,2)}, off, {sr(SWS,4)}, s{sHf} sc1 ;D Lhp"
        def wentry():
            for f in range(10):
                for t, _ in rdW(f): a(t)
        a.label(f"{N}_L1")
        stamp(3)
        for f in B_ENTRY: a(rdV(f)[0])
        a(HPOLL)
        a.ext(m0set(1))
        s.expw_plain(1, 1)
        a.ext(dma(1)); a.ext(adv_wr())
        plain(check_ops())
        a(f"s_mov_b32 s{sRet}, {len(s.sites[1])}")
        s.branch_check(1, "L1")
        phaseB(1, expq=None, nxt=None)
        wentry()
        a(f"v_mov_b32 v{vL+2}, v{NEGM(0)}\nv_mov_b32 v{vL+3}, v{NEGM(1)}")
        a(f"s_add_u32 s{t0}, s{sPart}, 16384")
        a(f"buffer_store_dwordx4 {vr(vL,4)}, v{vL16}, {sr(SWS,4)}, s{t0} offen sc1 ;D Tp")
        for k in range(16):
            b = 128 + 8 * k
            if k % 4 == 0: a(f"s_add_u32 s{t0}, s{sPart}, {k*1024}")
            s.cvt_block(b)
            a(f"buffer_store_dwordx4 {vr(b,4)}, v{vL16}, {sr(SWS,4)}, s{t0} offen offset:{(k%4)*1024} sc1 ;D Tp")
            if k:
                for r in range(4): a(f"v_accvgpr_read_b32 v{b-8+r}, a{192+4*(k-1)+r}")
        a(f"v_mov_b32 v{vL}, v{vRs}\nv_mov_b32 v{vL+1}, v{vRs+1}\ns_mov_b32 s{sFlIt}, 5")
        for r in range(4): a(f"v_accvgpr_read_b32 v{248+r}, a{252+r}")
        a(f"s_waitcnt vmcnt(21)\ns_branch {N}_oent")
        a.label(f"{N}_exit")
        a(f"s_cmp_lg_u32 s{sSeg}, 0\ns_cbranch_scc1 {N}_L1")
        a.label(f"{N}_T0")
        stamp(1)
        plain(cm_ops(0, 0))
        POLL = f"buffer_load_dword v{vPm}, off, {sr(SWS,4)}, s{sPoll} sc1 ;D Lpo"
        PTEST = f"v_readfirstlane_b32 s{t1}, v{vPm} ;U Lpo\ns_min_u32 s{sSeen}, s{t1}, s{sComb}\ns_cmp_lg_u32 s{sSeen}, 0"
        def part_loads(b):
            a(f"s_add_u32 s{t0}, s{b}, 16384")
            a(f"buffer_load_dwordx4 {vr(vPm,4)}, v{vL16}, {sr(SWS,4)}, s{t0} offen sc1 ;D Lp")
            for k in range(16):
                if k % 4 == 0: a(f"s_add_u32 s{t0}, s{b}, {k*1024}")
                a(f"buffer_load_dwordx4 {ar(128+4*k,4)}, v{vL16}, {sr(SWS,4)}, s{t0} offen offset:{(k%4)*1024} sc1 ;D Lp")
        a(POLL)
        phaseA(1, "T0", cinit=masked_c(0))
        phaseB(1, extra=cm_ops(0, 1), flag=True)
        a(f"s_waitcnt vmcnt(9)\n{PTEST}\ns_cselect_b32 s{t1}, s{sLd}, {NULLO}")
        a.label(f"{N}_T1")
        part_loads(t1)
        phaseA(0, "T1", cinit=masked_c(0))
        a(f"""
        s_cmp_ge_u32 s{sB}, 8
        s_cselect_b32 s{t0}, 0, s{sY}
        s_cmp_eq_u32 s{t0}, 0
        s_cbranch_scc1 {N}_sw1
        s_mov_b32 s{sSrc}, s{sKVh}
        s_add_u32 s{t0}, s{t0}, 1
        s_lshl_b32 s{t0}, s{t0}, 15
        s_add_u32 s{sSrcEnd}, s{sKVh}, s{t0}
        """)
        a.label(f"{N}_sw1r")
        phaseB(0, extra=cm_ops(1, 0), vm=33)
        phaseA(1, "T2", cinit=masked_c(1), half=True)
        phaseB(1, expq=1, extra=cm_ops(1, 1), vm=33, flag=True)
        phaseA(0, "T3", cinit=masked_c(1), half=True, expq=None)
        phaseB(0, half=True, accq=(1,), expq=1, nxt="V")
        a(HPOLL)
        a.ext(m0set(1))
        plain(check_ops())
        a.ext(dma(1)); a.ext(adv_wr())
        a(f"s_mov_b32 s{sRet}, {len(s.sites[1])}")
        s.branch_check(1, "T4")
        phaseB(1, half=True, accq=(1,), expq=None, nxt=None)
        stamp(2)
        a(f"s_cmp_eq_u32 s{sComb}, s{sSeen}\ns_cbranch_scc1 {N}_seen")
        a.label(f"{N}_unseen")
        s.spin("p", POLL, PTEST)
        part_loads(sLd)
        a("s_waitcnt vmcnt(0)")
        a.label(f"{N}_seen")
        a(f"s_cmp_lg_u32 s{sSrcEnd}, -1\ns_cbranch_scc1 {N}_stash")
        a.label(f"{N}_went")
        wentry()
        a(f"s_mov_b32 s{sFlIt}, -1\ns_cmp_eq_u32 s{sComb}, 0\ns_cbranch_scc1 {N}_nocomb")
        a.label(f"{N}_comb")
        a(f"""
        v_sub_f32 v{vT0}, v{NEGM(0)}, v{vPm+2} ;U Lp
        v_sub_f32 v{vT1}, v{NEGM(1)}, v{vPm+3}
        v_max_f32 v{vT2}, v{vT0}, v{vT1}
        v_cmp_lt_f32 vcc, 0x{f32hex(opt.get('cthr', 16.0))}, v{vT2}
        s_cbranch_vccnz {N}_crare
        """)
        a.label(f"{N}_cmb")
        a(f"v_exp_f32 v{vT0}, v{vT0}\nv_exp_f32 v{vT1}, v{vT1}\ns_nop 0")
        a(f"v_fmac_f32 v{vL}, v{vPm}, v{vT0}\nv_fmac_f32 v{vL+1}, v{vPm+1}, v{vT1}")
        for k in range(16):
            b = 128 + 8 * k
            for r in range(4): a(f"v_accvgpr_read_b32 v{vE+r}, a{128+4*k+r}")
            for r in range(4):
                a(f"v_lshlrev_b32 v{vE+4+r}, 16, v{vE+r}")
                a(f"v_and_b32 v{vE+r}, s{sMask}, v{vE+r}")
            for r in range(4):
                a(f"v_fmac_f32 v{b+2*r}, v{vE+4+r}, v{vT0+(k&1)}")
                a(f"v_fmac_f32 v{b+2*r+1}, v{vE+r}, v{vT0+(k&1)}")
        a.label(f"{N}_nocomb")
        s.xl(vL, "add")
        a(f"v_rcp_f32 v{vL}, v{vL}\nv_rcp_f32 v{vL+1}, v{vL+1}")
        for qs in range(2):
            for dk in range(8): s.cvt_block(OB(dk, qs))
        a("s_waitcnt vmcnt(4)")
        a.label(f"{N}_oent")
        stamp(4)
        a(f"""
        s_lshl_b32 s{t0}, s{sH}, 7
        s_lshl_b32 s{t1}, s{sB}, 3
        s_add_u32 s{t0}, s{t0}, s{t1}
        s_add_u32 s{t0}, s{t0}, s{sW}           ; h*128 + qsub
        s_mul_i32 s{sSt0}, s{t0}, {14*1024}
        s_add_u32 s{sSt0}, s{sSt0}, {SL_OFF}
        v_add_u32 v{vT1}, {4*14*1024}, v{vL16}
        s_lshl_b32 s{t0}, s{sB}, 6
        s_add_u32 s{t0}, s{t0}, s{sH}
        s_lshl_b32 s{t0}, s{t0}, 2
        s_add_u32 s{sLd}, s{t0}, {FLAG_OFF}
        s_mov_b32 s{sSeg}, 0
        s_cmp_ge_u32 s{sB}, 7
        s_cbranch_scc1 {N}_ogo
        """)
        a.label(f"{N}_hld")
        HTEST = f"v_min_u32 v{vHp}, v{vHp}, v{vHp+1} ;U Lhp\ns_nop 0\nv_readfirstlane_b32 s{t1}, v{vHp}\ns_cmp_lg_u32 s{t1}, 0"
        a(f"{HTEST}\ns_cbranch_scc1 {N}_spxh")
        s.spin("h", HPOLL, HTEST)
        for k in range(16):
            qs, dk = k >> 3, k & 7
            if k % 4 == 0: a(f"s_add_u32 s{t0}, s{sHo}, {qs * 4 * 56 * 1024 + dk * 1024}")
            a(f"buffer_load_dwordx4 {ar(4 * k, 4)}, v{vL16}, {sr(SWS,4)}, s{t0} offen offset:{(k & 3) * 1024} sc1 ;D Lh")
        a(f"s_mov_b32 s{sSeg}, 1")
        a.label(f"{N}_ogo")
        a(f"s_mov_b32 s{sSt1}, {NULLO}\ns_mov_b32 s{sCnt}, 6\ns_add_u32 s{sPoll}, s{sLd}, 128"); a.ext(m0set(1))
        if opt.get("onost"): a(f"s_mov_b32 s{sSt0}, {NULLO}")
        if opt.get("onold"): a(f"s_mov_b32 s{SG+2}, 0\ns_mov_b32 s{sNx+2}, 0")
        def otile(pr, kt, qs, g):
            x = S(pr, kt, qs); o = vOut + 4 * qs + 2 * kt
            v = [(g, f"v_mul_f32 v{x+r}, v{x+r}, v{vL+qs}", 1) for r in range(4)]
            v += [(g, f"v_cvt_pk_bf16_f32 v{o+r}, v{x+2*r}, v{x+2*r+1}", 1) for r in range(2)]
            if kt: v.append((g, f"buffer_store_dwordx4 {vr(o-2,4)}, v{vL16 if qs == 0 else vT1}, {sr(SWS,4)}, s{sSt1 if pr else sSt0} offen offset:{pr*1024} {opt.get('opol', 'sc1')} ;D Ts", 1))
            return v
        a(".p2align 6")
        a.label(f"{N}_oloop")
        sch.reset([100 + f for f in range(10) for _ in range(2)])
        mf = []
        for mt in range(4):
            for qs in range(2):
                for dk in range(8):
                    d = S(mt >> 1, mt & 1, qs)
                    mf.append((mm(d, F(mt * 8 + dk), vr(OB(dk, qs), 4), "0" if dk == 0 else vr(d, 4)), 100 + mt * 8 + dk))
        reads = {}
        for k in range(32):
            f = (10 + k) % 32
            rr = rdW(f)
            if k >= 22: rr = [(t, 300 + f) for t, _ in rr]
            reads[2 * k] = [rr[0]]; reads[2 * k + 1] = [rr[1]]
        d1, d0 = [1, 9, 16, 24], [46, 49, 53, 57]
        fv = {g: [d] for g, d in zip(d1 + d0, dma(1, vWo) + dma(0, vWo))}
        fv[17] = [UPDW[0]]; fv[25] = [UPDW[1]]; fv[33] = [UPDW[2]]; fv[0] = [UPDW[3]]; fv[45] = [FLAG]
        if opt.get("onodma"): fv = {g: x for g, x in fv.items() if "lds" not in x[0]}
        valu = otile(1, 1, 1, 2)
        for t in range(7): valu += otile(t >> 2, (t >> 1) & 1, t & 1, 8 * t + 9)
        if opt.get("onost2"): valu = [x for x in valu if "buffer" not in x[1]]
        sw = [f"s_cmp_eq_u32 s{sSrc}, 896"] + [f"s_cselect_b32 s{SG+k}, s{sNx+k}, s{SG+k}" for k in range(3)] + \
             [f"s_cselect_b32 s{sNx+2}, 0, s{sNx+2}", f"s_cselect_b32 s{sSrc}, 0, s{sSrc}",
              f"s_cmp_eq_u32 s{sCnt}, s{sFlIt}", f"s_cselect_b32 s{sFl}, s{sFlN}, s{sFl}"]
        arm = [f"s_cmp_eq_u32 s{sCnt}, 0", f"s_cselect_b32 s{sFl}, s{sPoll}, {NULLO}"]
        sch.phase(mf, reads, valu,
                  scal=[(8, t) for t in adv_rd()] + [(11, f"s_mov_b32 s{sSt1}, s{sSt0}")] + [(11, t) for t in arm] + [(24, t) for t in adv_wr() + sw] +
                       [(56, f"s_add_u32 s{sSt0}, s{sSt0}, 2048")] + [(58, t) for t in m0set(1)] + [(60, f"s_sub_u32 s{sCnt}, s{sCnt}, 1")],
                  fixed={43: [f"s_waitcnt vmcnt({opt.get('ovm', 28)})"], 44: ["s_nop 0" if opt.get("onobar") else "s_barrier"], 45: m0set(0)}, fixedv=fv)
        if opt.get("verbose"): print("oloop over", sch.over)
        a(f"s_cbranch_scc0 {N}_oloop")
        a.label(f"{N}_oend")
        a("s_nop 4")
        plain(otile(1, 1, 1, 0))
        a(f"""
        s_cmp_lg_u32 s{sSeg}, 1
        s_cbranch_scc1 {N}_fin
        s_mov_b32 s{sFlN}, s{sLd}
        """)
        a.label(f"{N}_ffn")
        stamp(5)
        for k in range(16):
            for r in range(4): a(f"v_accvgpr_read_b32 v{OB(k & 7, k >> 3)+r}, a{4*k+r}" + (" ;U Lh" if k + r == 0 else ""))
        a(f"""
        v_mov_b32 v{vL}, 0x{f32hex(1.0/QSCALE**2)}
        v_mov_b32 v{vL+1}, v{vL}
        s_add_u32 s{t0}, s{sB}, 16
        s_lshl_b32 s{t1}, s{sH}, 6
        s_add_u32 s{t1}, s{t1}, s{t0}
        s_lshl_b32 s{t1}, s{t1}, 2
        s_add_u32 s{sLd}, s{t1}, {FLAG_OFF}
        s_lshl_b32 s{t0}, s{t0}, 7
        s_lshl_b32 s{t1}, s{sH}, 3
        s_add_u32 s{t0}, s{t0}, s{t1}
        s_add_u32 s{t0}, s{t0}, s{sW}
        s_mul_i32 s{sSt0}, s{t0}, {14*1024}
        s_add_u32 s{sSt0}, s{sSt0}, {SL_OFF}
        s_mov_b32 s{sSeg}, 2
        s_mov_b32 s{sFlIt}, 4
        s_branch {N}_ogo
        """)
        a.label(f"{N}_stash")
        for f in A_ENTRY: a(rdK(f)[0])
        s.xl(vL, "add")
        a(f"v_rcp_f32 v{vRs}, v{vL}\nv_rcp_f32 v{vRs+1}, v{vL+1}")
        for r in range(4): a(f"v_mov_b32 v{P(1,1)+r}, 0")
        for k in range(16):
            b = 128 + 8 * k
            s.cvt_block(b)
            for r in range(4): a(f"v_accvgpr_write_b32 a{192+4*k+r}, v{b+r}")
            if k & 1: s.zeroO(k >> 1)
        for r in range(64): a(f"v_accvgpr_mov_b32 a{r}, a{128+r}" + (" ;U Lp" if r == 0 else ""))
        for r in range(8): a(f"v_mov_b32 v{CM(0)+r}, 0")
        a(f"s_mov_b32 s{sSeg}, 1\ns_mov_b32 s{sN}, s{sY}\ns_branch {N}_pro")
        a.label(f"{N}_stashe")
        a.label(f"{N}_crare")
        a(f"""
        v_max_f32 v{vT2}, 0, v{vT0}
        v_max_f32 v{vT3}, 0, v{vT1}
        v_sub_f32 v{vT0}, v{vT0}, v{vT2}
        v_sub_f32 v{vT1}, v{vT1}, v{vT3}
        v_exp_f32 v{vT2}, -v{vT2}
        v_exp_f32 v{vT3}, -v{vT3}
        s_nop 0
        """)
        for qs in range(2):
            a(f"v_mul_f32 v{vL+qs}, v{vL+qs}, v{vT2+qs}")
            for dk in range(8):
                for r in range(8): a(f"v_mul_f32 v{OB(dk,qs)+r}, v{OB(dk,qs)+r}, v{vT2+qs}")
        a(f"s_branch {N}_cmb")
        for p in range(2):
            a.label(f"{N}_rare{p}")
            a("s_nop 7")
            s.rowmax(p)
            a(f"v_max_f32 v{vT0}, 0, v{vT0}\nv_max_f32 v{vT1}, 0, v{vT1}")
            a(f"v_exp_f32 v{vT2}, -v{vT0}\nv_exp_f32 v{vT3}, -v{vT1}")
            for qs in range(2):
                for pp in range(2):
                    for kt in range(2):
                        for r in range(4): a(f"v_sub_f32 v{S(pp,kt,qs)+r}, v{S(pp,kt,qs)+r}, v{vT0+qs}")
                for r in range(4): a(f"v_sub_f32 v{NEGM(qs)+r}, v{NEGM(qs)+r}, v{vT0+qs}")
                a(f"v_mul_f32 v{vL+qs}, v{vL+qs}, v{vT2+qs}")
                for dk in range(8):
                    for r in range(8): a(f"v_mul_f32 v{OB(dk,qs)+r}, v{OB(dk,qs)+r}, v{vT2+qs}")
                s.expw_plain(p, qs)
            for k, tag in enumerate(s.sites[p][:-1]):
                a(f"s_cmp_eq_u32 s{sRet}, {k}\ns_cbranch_scc1 {N}_ret_{tag}")
            a(f"s_branch {N}_ret_{s.sites[p][-1]}")
        s.final()
    def final(s):
        a, N = s.a, s.N
        vU, vXo, vFp, vFo, vX, vSel, SA, YA, vE2 = 10, 12, 14, 15, 32, 72, 88, 104, 40
        sSl, sFo = sSt0, sSt1
        a.label(f"{N}_fin")
        s.stamp(6)
        FP = f"buffer_load_dword v{vFp}, v{vFo}, {sr(SWS,4)}, s{sFo} offen sc1"
        a(f"""
        v_lshrrev_b32 v{vFo}, 2, v{vL16}
        s_lshl_b32 s{sFo}, s{sB}, 8
        s_add_u32 s{sFo}, s{sFo}, {FLAG_OFF}
        {FP}
        s_lshl_b32 s{t0}, s{sB}, 3
        s_lshr_b32 s{t1}, s{sH}, 1
        s_add_u32 s{t0}, s{t0}, s{t1}          ; qsub
        s_and_b32 s{t1}, s{sH}, 1
        s_lshl_b32 s{t2}, s{sW}, 2
        s_add_u32 s{t1}, s{t1}, s{t2}          ; mp
        s_mul_i32 s{sSl}, s{t0}, 14
        s_add_u32 s{sSl}, s{sSl}, s{t1}
        s_lshl_b32 s{sSl}, s{sSl}, 10
        s_add_u32 s{sSl}, s{sSl}, {SL_OFF}
        s_mul_i32 s{t0}, s{t0}, {16*896}
        s_lshl_b32 s{t1}, s{t1}, 6
        s_add_u32 s{t0}, s{t0}, s{t1}
        s_cmp_eq_u32 s{sW}, 3
        s_cselect_b32 s{t2}, 0x7f000000, 0
        v_bfe_u32 v{vT0}, v{vL16}, 4, 4        ; j
        v_lshrrev_b32 v{vT2}, 8, v{vL16}       ; g
        v_mul_u32_u24 v{vXo}, 896, v{vT0}
        v_lshl_add_u32 v{vXo}, v{vT2}, 3, v{vXo}
        v_add_u32 v{vXo}, s{t0}, v{vXo}
        v_add_u32 v{vXo+1}, s{t2}, v{vXo}
        v_add_u32 v{vU}, s{t2}, v{vL16}
        s_mov_b32 s{SX2}, s{pX}
        s_mov_b32 s{SX2+1}, s{pX+1}
        s_mov_b32 s{SX2+2}, {XN_BYTES}
        s_mov_b32 s{SX2+3}, 0x20000
        """)
        for k in range(4): a(f"buffer_load_dwordx2 {vr(vX+2*k,2)}, v{vXo+(k>>1)}, {sr(SX2,4)}, 0 offen offset:{32*(k&1) + 128*(k>>1)}")
        a(f"""
        s_mov_b32 s{SO}, s{pOUT}
        s_mov_b32 s{SO+1}, s{pOUT+1}
        s_mov_b32 s{SO+2}, {XN_BYTES}
        s_mov_b32 s{SO+3}, 0x20000
        s_mov_b32 s{sFl}, s{sLd}
        s_cmp_lt_u32 s{sW}, 2
        s_cselect_b32 s{sPoll}, 0, -1
        v_lshrrev_b32 v{vT1}, 2, v{vT0}
        v_cmp_eq_u32 vcc, v{vT1}, v{vT2}
        v_and_b32 v{vT1}, 1, v{vT0}
        v_lshlrev_b32 v{vT1}, 4, v{vT1}
        v_mov_b32 v{vT3}, 0x3f80
        v_lshlrev_b32 v{vT3}, v{vT1}, v{vT3}
        v_cndmask_b32 v{vT3}, 0, v{vT3}, vcc
        v_and_b32 v{vT1}, 2, v{vT0}
        v_cmp_eq_u32 vcc, 0, v{vT1}
        v_mov_b32 v{vSel}, 0
        v_mov_b32 v{vSel+1}, 0
        v_mov_b32 v{vSel+4}, 0
        v_mov_b32 v{vSel+5}, 0
        v_cndmask_b32 v{vSel+2}, 0, v{vT3}, vcc
        v_cndmask_b32 v{vSel+3}, v{vT3}, 0, vcc
        s_mov_b32 s{sSpin}, {SPINMAX}
        s_waitcnt vmcnt(4)
        s_barrier
        {FLAG}
        """)
        a.label(f"{N}_fine")
        if s.opt.get("fst"): s.stamp(3)
        def ld(dst, hh, u): return f"buffer_load_dwordx4 {dst}, v{vU if u else vL16}, {sr(SWS,4)}, s{t0} offen offset:{u*2048} sc1"
        def SF(h, u): return vr(128 + (2 * h + u) * 4, 4)
        def YF(f, u): return ar((2 * f + u) * 4, 4)
        def loads(R, h0, n):
            for h in range(n):
                a(f"s_add_u32 s{t0}, s{sSl}, {(h0 + h) * SLS}")
                for u in range(2): a(ld(R(h, u), h, u))
        def summ(R, n, A, after):
            for h in range(n):
                a(f"s_waitcnt vmcnt({after + 2 * (n - 1 - h)})")
                for u in range(2):
                    for hf in range(2):
                        d = A + 8 * u + 4 * hf
                        a(mm(d, vr(vSel + 2 - 2 * hf, 4), R(h, u), "0" if h == 0 else vr(d, 4)))
        def gate():
            a(f"s_mov_b32 s{t1}, 0x{f32hex(-LOG2E)}\ns_nop 6")
            for r in range(16): a(f"v_mul_f32 v{vE2+r}, s{t1}, v{YA+r}")
            for r in range(16): a(f"v_exp_f32 v{vE2+r}, v{vE2+r}")
            for r in range(16): a(f"v_add_f32 v{vE2+r}, 1.0, v{vE2+r}")
            for r in range(16): a(f"v_rcp_f32 v{vE2+r}, v{vE2+r}")
            for r in range(16): a(f"v_mul_f32 v{YA+r}, v{YA+r}, v{vE2+r}")
            for r in range(8): a(f"v_lshlrev_b32 v{vE2+2*r}, 16, v{vX+r}\nv_and_b32 v{vE2+2*r+1}, s{sMask}, v{vX+r}")
        TEST = f"v_cmp_eq_u32 vcc, 0, v{vFp}\ns_or_b32 s{t1}, vcc_hi, s{sPoll}\ns_and_b32 s{t2}, vcc_lo, s{t1}"
        def repoll(back, giveup):
            a(f"s_sub_u32 s{sSpin}, s{sSpin}, 1\ns_cbranch_scc1 {giveup}\n{FP}\ns_waitcnt vmcnt(0)\ns_branch {back}")
        a.label(f"{N}_fa")
        a(f"{TEST}\ns_and_b32 s{t1}, s{t2}, 0x7f0000\ns_cbranch_scc0 {N}_fy\ns_and_b32 s{t1}, s{t2}, 0xffff\ns_cbranch_scc0 {N}_fs")
        repoll(f"{N}_fa", f"{N}_fy")
        a.label(f"{N}_fs")
        loads(SF, 0, 16)
        a.label(f"{N}_fs1")
        repoll(f"{N}_fs2", f"{N}_fs3")
        a.label(f"{N}_fs2")
        a(f"{TEST}\ns_and_b32 s{t1}, s{t2}, 0x7f0000\ns_cbranch_scc1 {N}_fs1")
        a.label(f"{N}_fs3")
        loads(YF, 16, 7)
        summ(SF, 16, SA, 14); summ(YF, 7, YA, 0); gate()
        a(f"s_branch {N}_fout")
        a.label(f"{N}_fy")
        if s.opt.get("fst"): s.stamp(5)
        loads(YF, 16, 7)
        a(f"s_branch {N}_fy2")
        a.label(f"{N}_fy1")
        repoll(f"{N}_fy2", f"{N}_fy3")
        a.label(f"{N}_fy2")
        a(f"{TEST}\ns_and_b32 s{t1}, s{t2}, 0xffff\ns_cbranch_scc1 {N}_fy1")
        a.label(f"{N}_fy3")
        s.stamp(7)
        loads(SF, 0, 16)
        summ(YF, 7, YA, 32); gate(); summ(SF, 16, SA, 0)
        a("s_nop 4")
        a.label(f"{N}_fout")
        if s.opt.get("fst"): s.stamp(1)
        for r in range(16): a(f"v_fmac_f32 v{vE2+r}, v{SA+r}, v{YA+r}")
        for r in range(8): a(f"v_cvt_pk_bf16_f32 v{vX+r}, v{vE2+2*r}, v{vE2+2*r+1}")
        for k in range(4): a(f"buffer_store_dwordx2 {vr(vX+2*k,2)}, v{vXo+(k>>1)}, {sr(SO,4)}, 0 offen offset:{32*(k&1) + 128*(k>>1)}")
    def stamps_out(s):
        a = s.a
        a(f"""
        s_waitcnt vmcnt(0)
        s_memtime s[4:5]
        s_memrealtime s[6:7]
        s_waitcnt lgkmcnt(0)
        s_sub_u32 s{t0}, s4, s{sTm}
        s_sub_u32 s{t1}, s6, s{sTm+10}
        v_mov_b32 v24, s{t0}
        v_mov_b32 v25, s{t1}
        v_mov_b32 v26, s{sTm+10}
        v_mov_b32 v27, s6
        s_lshl_b32 s{t2}, s2, 6
        s_lshl_b32 s{t3}, s{sW}, 4
        s_add_u32 s{t2}, s{t2}, s{t3}
        s_add_u32 s{t2}, s{t2}, {STAMP_OFF + MB}
        v_mov_b32 v28, 0
        s_mov_b64 exec, 1
        buffer_store_dwordx4 v[24:27], v28, {sr(SWS,4)}, s{t2} offen
        """)
        for blk in range(2):
            for k in range(4): a(f"s_sub_u32 s{t0}, s{STP[4*blk+k]}, s{sTm}\nv_mov_b32 v{4+4*blk+k}, s{t0}")
            a(f"s_add_u32 s{t2}, s{t2}, 65536")
            a(f"buffer_store_dwordx4 v[{4+4*blk}:{7+4*blk}], v28, {sr(SWS,4)}, s{t2} offen")
        a(f"v_mov_b32 v12, s{sSeen}\ns_add_u32 s{t2}, s{t2}, 65536\nbuffer_store_dword v12, v28, {sr(SWS,4)}, s{t2} offen")
    def paths(s, f1=None):
        N = s.N
        L = lambda x, y, *z: (f"{N}_{x}", f"{N}_{y}") + z
        def steps(ne, f=f1):
            r = []
            for k in range(ne):
                r.append(L("loop", "lo"))
                if k < ne - 1: r.append(L("lo", "sw0", f) if f and k == 0 else L("lo", "sw0"))
            return r
        def ol(fl=None, it=0): return [L("ogo", "oloop")] + [L("oloop", "oend", fl) if fl and k == it else L("oloop", "oend") for k in range(7)] + [L("oend", "ffn")]
        fin = [L("fin", "fine", "Ts")]
        pro = [L("pro", "proe")]
        ffn = [("@ren", "Ts", "Tz"), L("ffn", "stash")] + ol("Tz", 2)
        helper = lambda ne: [L("seen", "went"), L("stash", "stashe")] + pro + steps(ne, None) + [L("L1", "exit"), L("oent", "sph"), L("spxh", "ogo")] + ol("Tp", 1) + ffn + fin
        A = pro + steps(4) + [L("T0", "unseen"), L("seen", "hld")] + ol() + fin
        B0 = pro + [L("T1", "seen", f1) if f1 else L("T1", "seen")] + helper(3)
        B1 = pro + steps(2) + [L("T0", "unseen")] + helper(2)
        B6 = pro + steps(3) + [L("T0", "unseen"), L("seen", "comb"), L("nocomb", "sph"), L("spxh", "ogo")] + ol() + ffn + fin
        return [A, B0, B1, B6]

def gen_k2(name="attn_kernel", opt=None):
    opt = opt or {}
    a = Asm(); N = name
    P = P2(a, N, opt)
    a(f".p2align 8\n.globl {N}\n.type {N},@function")
    a.label(N)
    a(f"s_cmp_ge_u32 s2, 256\ns_cbranch_scc1 {N}_done")
    if opt.get("stamp"): a(f"s_memtime s[{sTm}:{sTm+1}]\ns_memrealtime s[{sTm+10}:{sTm+11}]")
    P.standalone()
    P.body()
    if opt.get("stamp"): P.stamps_out()
    a.label(f"{N}_done")
    a("s_endpgm")
    import trace
    for p in P.paths(): print("trace2 bad:", trace.check(a.text(), [(N, f"{N}_pro")] + p))
    return a.text(), kernel_desc(N, 512, 102, 256), f"; @launch kernel={N} grid=(256,1,1) block=(256,1,1) lds=163840"
```

```python
import re
def segs(text):
    lines = [l.strip() for l in text.split("\n")]
    lab = {l[:-1]: i for i, l in enumerate(lines) if l.endswith(":")}
    return lines, lab
def tag(l, t): return l.split(t + " ")[1].split()[0] if t + " " in l else None
def check(text, path, verbose=True, ring0=4, alias={}):
    lines, lab = segs(text)
    vm = []; lg = []; bad = 0
    landed = {}
    rdone = {}
    shared = lambda p: p[0] in "XST"
    ws = rs = ring0; base = {}; logical = {}
    def err(*x):
        nonlocal bad
        print(*x); bad += 1
    def war(p, a, l):
        for q in [p] + alias.get(p, []):
            if q in lg or (shared(q) and rdone.get(q, "all") != "all"): err("WAR", a, l, q)
            if q != p: landed[q] = None
    for sg in path:
        if sg[0] == "@ren":
            vm[:] = [sg[2] if x == sg[1] else x for x in vm]; landed[sg[2]] = landed.pop(sg[1], None); continue
        a, b = sg[:2]; armed = sg[2] if len(sg) > 2 else None
        assert lab[a] <= lab[b], (a, b)
        for l in lines[lab[a]:lab[b]]:
            op = l.split()[0] if l else ""
            u = tag(l, ";U")
            if u and (u in vm or landed.get(u) is None): err("USE", a, l)
            if ";AW" in l: ws += 1
            if ";AS" in l: rs += 1
            if tag(l, ";AR"): base[tag(l, ";AR")] = rs
            if ";FLAG" in l and armed:
                for nm in armed.split(","):
                    if nm in vm or landed.get(nm) != "all": err("FLAG", a, l, nm, landed.get(nm))
                armed = None
            if op.startswith("buffer_"):
                p = tag(l, ";D")
                if p and p.startswith("S@"):
                    p = f"S{ws % 5}.{p[2]}"; logical[p] = ws
                if p:
                    war(p, a, l)
                    landed[p] = None
                vm.append(p)
            elif op.startswith("ds_"):
                p = tag(l, ";R")
                if p and p.startswith("S@"):
                    r = base[p[4]]; p = f"S{r % 5}.{p[2]}"
                    if logical.get(p) != r: err("SLOT", a, l, logical.get(p), r)
                if p:
                    if p in vm or ("W" + p) in lg or landed.get(p) is None or (shared(p) and landed[p] != "all"): err("RAW", a, l, landed.get(p), p in vm)
                    rdone[p] = "pend"
                w = tag(l, ";W")
                if w:
                    war(w, a, l); landed[w] = None; p = "W" + w
                lg.append(p)
            elif op == "s_waitcnt":
                m = re.search(r"vmcnt\((\d+)\)", l)
                if m:
                    while len(vm) > int(m[1]):
                        p = vm.pop(0)
                        if p and p not in vm: landed[p] = "own"
                m = re.search(r"lgkmcnt\((\d+)\)", l)
                if m:
                    while len(lg) > int(m[1]):
                        p = lg.pop(0)
                        if p and p not in lg:
                            if p[0] == "W": landed[p[1:]] = "own"
                            else: rdone[p] = "own"
            elif op == "s_barrier":
                for p in landed:
                    if landed[p] == "own": landed[p] = "all"
                for p in rdone:
                    if rdone[p] == "own": rdone[p] = "all"
        if armed: err("FLAG never sent", sg)
    return bad
```

```python
import sys, json
HDR = open("recurrent_scan__compressed_kv_cla__swiglu_ffn__prompt.s.ref").read().split("; Override launch")[0]
def build(ks):
    out = HDR
    for t, d, l in ks: out += l + "\n"
    out += '.amdgcn_target "amdgcn-amd-amdhsa--gfx950"\n.text\n'
    for t, d, l in ks: out += t
    out += '.section .rodata,"a"\n'
    for t, d, l in ks: out += ".p2align 6\n" + d
    return out
if __name__ == "__main__":
    opt = json.loads(sys.argv[2]) if len(sys.argv) > 2 else {}
    import fz
    open(sys.argv[1], "w").write(build([fz.gen(opt)]))
```

```python
import sys, json
HDR = open("recurrent_scan__compressed_kv_cla__swiglu_ffn__prompt.s.ref").read().split("; Override launch")[0]
def build(ks):
    out = HDR
    for t, d, l in ks: out += l + "\n"
    out += '.amdgcn_target "amdgcn-amd-amdhsa--gfx950"\n.text\n'
    for t, d, l in ks: out += t
    out += '.section .rodata,"a"\n'
    for t, d, l in ks: out += ".p2align 6\n" + d
    return out
if __name__ == "__main__":
    opt = json.loads(sys.argv[2]) if len(sys.argv) > 2 else {}
    from k1n import gen_k1
    from p2 import gen_k2
    ks = [gen_k1(opt=opt), gen_k2(opt=opt)]
    open(sys.argv[1], "w").write(build(ks))
```

```python
from asmlib import *
from layout import *
from k0 import f32hex

SW = [4, 8, 12, 16]; SX, SWS, SPF, SDBG, STMP = 20, 24, 28, 32, 36
pX, pC, pWQ, pWUK, pWUV, pWO, pWG, pWU, pWD, pOUT, pDBG, pWS = 40, 42, 44, 46, 48, 50, 54, 56, 58, 60, 62, 64
sW, sWreg, sH, sB = 66, 67, 68, 69
sXs, sWa, sWb, sPfz = 70, 71, 72, 73
sPf, sPfStg, sStg, sFlagStg = 74, 75, 76, 77
sSt = 78
t0, t1, t2, t3 = 86, 87, 88, 89
sTm = 90
vWA, vWG, vWB, vPf, vFo, vXo, vXr, vWr, vSt, vPoll = 2, 4, 6, 8, 9, 10, 14, 16, 20, 21
vFd = 23
vT = 24
def acc(o, n): return 32 + (o * 8 + n) * 4 if o < 7 else None
def accs(o, n): return vr(acc(o, n), 4) if o < 7 else ar(4 * n, 4)
def XF(par, n, ks): return ar(32 + par * 64 + (n * 2 + ks) * 4, 4)
def WF(o, ks, t=None):
    b = 160 + ((o & 3) * 2 + ks) * 4
    return ar(b, 4) if t is None else ar(b + 2 * t, 2)
def STASH(a, c, m): return 192 + ((a * 2 + c) * 4 + m) * 4
SG0 = [42, 50, 58, 66, 74, 82, 94, 102]
def wpiece(par, p): return (par ^ 1) * 4 + p

def rdW(par, o):
    return [(f"ds_read_b64_tr_b16 {WF(o, ks, t)}, v{vWr + 2 * (par ^ 1) + (o & 1)} offset:{((o >> 2) * 2 + ks) * 16384 + ((o >> 1) & 1) * 1024 + t * 256}", ("W", par, o, ks))
            for ks in range(2) for t in range(2)]
def rdX(par):
    return [(f"ds_read_b128 {XF(par, n, ks)}, v{vXr + ks} offset:{par * 16384 + n * 2048} ;R X{par}", ("X", par))
            for n in range(8) for ks in range(2)]
def dmaW(par, p, t2=False):
    return [f"buffer_load_dwordx4 v{(vWG if p < 2 and t2 else vWA) + (j >> 1)}, {sr(SW[(p & 2) + (j & 1)], 4)}, s{sWa if p < 2 else sWb} offen offset:{j * 1024} lds ;D P{p}{par}" for j in range(4)]
def dmaX(par, t2=False):
    return [f"buffer_load_dwordx4 v{vXo + j}, {sr(SX, 4)}, s{sXs} offen offset:{j * 1024} {'sc1 ' if t2 else ''}lds ;D X{par}" for j in range(4)]
def m0p(i): return f"s_add_u32 m0, s{sWreg}, {i * 16384}"
def store(src, c, m, imm, srd=SWS, pol="sc1"): return f"buffer_store_dwordx4 {src}, v{vSt}, {sr(srd, 4)}, s{sSt + c * 4 + m} offen offset:{imm} {pol}"
def stash_store(k, pol):
    a, c, m = k >> 3, k & 1, (k >> 1) & 3
    return store(ar(STASH(a, c, m), 4), c, m, (1 + a) * 1024, SWS, pol)
POLL = f"buffer_load_dword v{vPoll}, v{vPoll+1}, {sr(SDBG, 4)}, 0 offen sc1"
def PF(k): return f"buffer_load_dword v{vT+7}, v{vPf}, {sr(SPF, 4)}, s{sPf} offen offset:{128 * k}"
OPT = {}
DG = [[33, 39, 45, 51], [57, 63, 69, 75], [97, 101, 105, 109], [113, 117, 121, 125]]
XG = [3, 9, 15, 21]
def vm_plan(par, t2=False):
    fv, fx = {}, {}
    for g, d in zip(XG, dmaX(par, t2)): fv.setdefault(g, []).append(d)
    fx[XG[0] - 1] = [m0p(8 + par)]
    fx[XG[3] + 1] = [f"s_add_u32 s{sXs}, s{sXs}, 128"]
    for p in range(4):
        for g, d in zip(DG[p], dmaW(par, p, t2)): fv.setdefault(g, []).append(d)
        fx[DG[p][0] - 3] = [m0p(wpiece(par, p))]
        r = sWa if p < 2 else sWb
        fx.setdefault(DG[p][3] + (1 if p != 2 else 2), []).append(f"s_add_u32 s{r}, s{r}, {32 * (3584 if p < 2 and t2 else 8192)}")
    return fv, fx
def canon(par):
    fv, _ = vm_plan(par)
    return [(l.split(";D ")[1].split()[0] if ";D " in l else "-") for g in sorted(fv) for l in fv[g]]

def cvt(d, a, b): return f"v_cvt_pk_bf16_f32 v{d}, v{a}, v{b}"
def packA(A, B, g): return [(g, cvt(A, A, A + 1), 1), (g, cvt(A + 1, A + 2, A + 3), 1), (g, cvt(A + 2, B, B + 1), 1), (g, cvt(A + 3, B + 2, B + 3), 1)]
def packB(A, B, g): return [(g, cvt(B + 3, B + 2, B + 3), 1), (g, cvt(B + 2, B, B + 1), 1), (g, cvt(B, A, A + 1), 1), (g, cvt(B + 1, A + 2, A + 3), 1)]
def packTo(D, A, B, g): return [(g, cvt(D, A, A + 1), 1), (g, cvt(D + 1, A + 2, A + 3), 1), (g, cvt(D + 2, B, B + 1), 1), (g, cvt(D + 3, B + 2, B + 3), 1)]
def toStash(S, A, g): return [(g, f"v_accvgpr_write_b32 a{S + r}, v{A + r}", 1) for r in range(4)]
def fromAcc(D, n, g): return [(g, f"v_accvgpr_read_b32 v{D + r}, a{4 * n + r}", 1) for r in range(4)]

def ln2(a, R, X, T, s0):
    def both(f):
        for k in range(2): a(f(R + 4 * k, X + 8 * k, T + 3 * k))
    def wsum(off):
        for d in ("quad_perm:[1,0,3,2]", "quad_perm:[2,3,0,1]", "row_half_mirror", "row_mirror"):
            a("s_nop 0")
            both(lambda R, X, T: f"v_add_f32_dpp v{T+off}, v{T+off}, v{T+off} {d} row_mask:0xf bank_mask:0xf")
        for sw in ("16", "32"):
            both(lambda R, X, T: f"v_mov_b32 v{T+1}, v{T+off}")
            a("s_nop 0")
            both(lambda R, X, T: f"v_permlane{sw}_swap_b32 v{T+off}, v{T+1}")
            both(lambda R, X, T: f"v_add_f32 v{T+off}, v{T+off}, v{T+1}")
    def rnd(off):
        both(lambda R, X, T: f"v_cvt_pk_bf16_f32 v{T+off}, v{T+off}, v{T+off}")
        both(lambda R, X, T: f"v_lshlrev_b32 v{T+off}, 16, v{T+off}")
    def unpack():
        for i in range(4):
            both(lambda R, X, T: f"v_lshlrev_b32 v{X+2*i}, 16, v{R+i}\nv_and_b32 v{X+2*i+1}, 0xffff0000, v{R+i}")
    unpack()
    both(lambda R, X, T: f"v_add_f32 v{T}, v{X}, v{X+1}")
    for i in range(2, 8): both(lambda R, X, T: f"v_add_f32 v{T}, v{T}, v{X+i}")
    wsum(0)
    both(lambda R, X, T: f"v_mul_f32 v{T}, 0x{f32hex(1.0/448)}, v{T}")
    both(lambda R, X, T: f"v_sub_f32 v{T+1}, v{X}, v{T}\nv_mul_f32 v{T+2}, v{T+1}, v{T+1}")
    for i in range(1, 8): both(lambda R, X, T: f"v_sub_f32 v{T+1}, v{X+i}, v{T}\nv_fmac_f32 v{T+2}, v{T+1}, v{T+1}")
    both(lambda R, X, T: f"v_cndmask_b32 v{T+2}, 0, v{T+2}, vcc")
    wsum(2)
    both(lambda R, X, T: f"v_mul_f32 v{T+2}, 0x{f32hex(1.0/448)}, v{T+2}")
    rnd(0); rnd(2)
    both(lambda R, X, T: f"v_add_f32 v{T+2}, 0x{f32hex(1e-5)}, v{T+2}")
    rnd(2)
    both(lambda R, X, T: f"v_sqrt_f32 v{T+2}, v{T+2}")
    a("s_nop 0")
    rnd(2)
    both(lambda R, X, T: f"v_rcp_f32 v{T+2}, v{T+2}")
    for i in range(8): both(lambda R, X, T: f"v_sub_f32 v{X+i}, v{X+i}, v{T}")
    both(lambda R, X, T: f"v_mul_f32 v{T+2}, 0x{f32hex(QSCALE)}, v{T+2}")
    for i in range(4): both(lambda R, X, T: cvt(R + i, X + 2 * i, X + 2 * i + 1))
    unpack()
    for i in range(8): both(lambda R, X, T: f"v_mul_f32 v{X+i}, v{X+i}, v{T+2}")
    for i in range(4): both(lambda R, X, T: cvt(R + i, X + 2 * i, X + 2 * i + 1))

def srd(d, lo, off, size):
    r = [f"s_add_u32 s{d}, s{lo}, s{off}", f"s_addc_u32 s{d+1}, s{lo+1}, 0"] if off is not None else [f"s_mov_b32 s{d}, s{lo}", f"s_mov_b32 s{d+1}, s{lo+1}"]
    return r + [size.replace("@", f"s{d+2}"), f"s_mov_b32 s{d+3}, 0x20000"]

def back1k(d): return [f"s_sub_u32 s{d}, s{d}, 1024", f"s_subb_u32 s{d+1}, s{d+1}, 0"]

class P1:
    def __init__(s, a, N, opt):
        s.a, s.N, s.opt = a, N, opt
        OPT.clear(); OPT.update(opt)
        s.sch = Sched(a)
        s.pol = opt.get("kvpol", "sc1")
    def stamp(s, i, pst=False):
        if s.opt.get("stamp") and bool(s.opt.get("pst")) == pst: s.a(f"s_memtime s[{sTm + 2 + 2 * i}:{sTm + 3 + 2 * i}]")
    def stage(s, par, swap=False, first=False, valu=[], stores={}, dma=1, nxt=True, seed=False, carry=False, xfv={}, xfx={}, scal=[]):
        sch = s.sch
        sch.reset([])
        if seed: sch.vmq = canon(par) + canon(par ^ 1)
        mf = []
        for o in range(8):
            for n in range(8):
                for ks in range(2):
                    A, B = (XF(par, n, ks), WF(o, ks)) if swap else (WF(o, ks), XF(par, n, ks))
                    c = "0" if first and ks == 0 else accs(o, n)
                    mf.append((f"v_mfma_f32_16x16x32_bf16 {accs(o, n)}, {A}, {B}, {c}", ("W", par, o, ks)))
        fv, fx = vm_plan(par, dma == 2) if dma else ({}, {})
        for g, l in stores.items(): fv.setdefault(g, []).append(l)
        for g, l in xfv.items(): fv.setdefault(g, []).extend(l)
        for g, l in xfx.items(): fx.setdefault(g, []).extend(l)
        reads = {}
        for o in range(8 if nxt else 6):
            pp, oo = (par, o + 2) if o < 6 else (par ^ 1, o - 6)
            for k, r in enumerate(rdW(pp, oo)): reads[16 * o + 2 + 2 * k] = [r]
            if oo % 4 == 0:
                fx.setdefault(16 * o - 1, []).insert(0, "s_waitcnt lgkmcnt(0)")
                fx.setdefault(16 * o, []).insert(0, f"s_waitcnt vmcnt(@VT:P{oo >> 1}{pp}@)")
                fx.setdefault(16 * o + 4, []).insert(0, f"s_waitcnt vmcnt(@VT:P{(oo >> 1) + 1}{pp}@)")
        if nxt:
            fx.setdefault(58, []).append(f"s_waitcnt vmcnt(@VT:X{par ^ 1}@)")
            fx.setdefault(59, []).append("s_barrier")
            for k, r in enumerate(rdX(par ^ 1)): reads[61 + 2 * k if k < 12 else 99 + 4 * (k - 12)] = [r]
            fx.setdefault(123, []).append("s_waitcnt lgkmcnt(0)")
            fx.setdefault(124, []).append("s_barrier")
        if s.opt.get("stamp") and nxt:
            fx.setdefault(1, []).append("s_memtime s[52:53]")
            fv.setdefault(119, []).append(f"v_cmp_eq_u32 vcc, s{sStg}, v1")
            fv.setdefault(124, []).append(f"v_mov_b32 v7, s52")
            fv.setdefault(126, []).append(f"v_cndmask_b32 v6, v6, v7, vcc")
        r = sch.phase(mf, reads, valu, scal=list(scal) + [(100, f"s_add_u32 s{sStg}, s{sStg}, 1")], fixed=fx, fixedv=fv, carry=carry)
        if s.opt.get("verbose"): print("stage over", sch.over, "left", len(r or []))
        return r
    def prologue(s):
        a, N = s.a, s.N
        a(f"""
        s_load_dwordx16 s[40:55], s[0:1], 0
        s_load_dwordx8 s[56:63], s[0:1], 64
        s_load_dwordx2 s[64:65], s[0:1], 96
        v_lshrrev_b32 v1, 6, v0
        s_and_b32 s{sH}, s2, 15
        v_readfirstlane_b32 s{sW}, v1
        v_and_b32 v1, 63, v0
        s_lshr_b32 s{sB}, s2, 4
        v_lshlrev_b32 v{vSt}, 4, v1
        s_lshl_b32 s{sWreg}, s{sW}, 12
        s_lshl_b32 s{t0}, s{sB}, 4
        s_add_u32 s{t0}, s{t0}, s{sH}
        s_lshl_b32 s{t0}, s{t0}, 2
        s_add_u32 s{t0}, s{t0}, s{sW}
        s_mul_i32 s{t1}, s{t0}, {2*896}
        s_lshl_b32 s{t3}, s{t0}, 12
        v_cmp_gt_u32 vcc, 56, v1
        v_mov_b32 v{vT}, 0x7fffff00
        ; X voffs
        v_lshrrev_b32 v{vT+1}, 3, v1
        s_lshl_b32 s{t2}, s{sW}, 5
        v_cndmask_b32 v22, v{vT}, v{vSt}, vcc
        v_add_u32 v{vT+1}, s{t2}, v{vT+1}
        v_lshlrev_b32 v{vT+1}, 11, v{vT+1}
        v_lshrrev_b32 v{vT+2}, 4, v1         ; g
        v_and_b32 v{vT+3}, 7, v1
        v_xor_b32 v{vT+3}, v{vT+3}, v{vT+2}
        v_lshl_add_u32 v{vXo}, v{vT+3}, 4, v{vT+1}
        v_xor_b32 v{vT+3}, 4, v{vT+3}
        v_lshl_add_u32 v{vXo+1}, v{vT+3}, 4, v{vT+1}
        v_add_u32 v{vXo+2}, {2*(16384-1024)}, v{vXo}
        v_add_u32 v{vXo+1}, {16384-1024}, v{vXo+1}
        v_add_u32 v{vXo+3}, {2*(16384-1024)}, v{vXo+1}
        ; W voffs
        v_lshrrev_b32 v{vT+4}, 5, v1
        v_lshlrev_b32 v{vT+4}, 1, v{vT+4}
        v_and_b32 v{vT+3}, 3, v1
        v_xor_b32 v{vT+4}, v{vT+4}, v{vT+3}
        v_lshlrev_b32 v{vWG}, 4, v{vT+4}     ; chunk*16
        v_lshrrev_b32 v{vT+1}, 2, v1
        v_lshl_add_u32 v{vWA}, v{vT+1}, 13, v{vWG}
        """)
        a(f"v_add_u32 v{vWA+1}, {16*8192-2048}, v{vWA}")
        pre, post, post2 = s.pf_first()
        a(pre)
        a(f"""
        s_lshl_b32 s{sXs}, s{sB}, 18
        s_mov_b32 s{sWa}, 0
        s_mov_b32 s{sWb}, 0
        s_lshl_b32 s{t0}, s{sH}, 9
        s_and_b32 s{t2}, s{sW}, 1
        s_lshl_b32 s{t2}, s{t2}, 8
        s_add_u32 s{t0}, s{t0}, s{t2}
        s_waitcnt lgkmcnt(0)
        """)
        s.stamp(0, True)
        pf0 = s.opt.get("pf0", 2)
        a(post if pf0 > 0 else post.split("buffer")[0])
        a.ext(srd(STMP, pX, None, f"s_mov_b32 @, {XN_BYTES}"))
        a.ext(srd(SX, pC, None, f"s_mov_b32 @, {2048*2048}"))
        a(f"buffer_load_dwordx4 v[32:35], v22, {sr(STMP,4)}, s{t1} offen")
        a(f"buffer_load_dwordx4 v[36:39], v22, {sr(STMP,4)}, s{t1} offen offset:896")
        s.npf = 0
        if pf0 == 2: a(post2); s.npf = 1
        a(f"s_cmp_lt_u32 s{sW}, 2\ns_cselect_b32 s52, s{pWUK}, s{pWUV}\ns_cselect_b32 s53, s{pWUK+1}, s{pWUV+1}")
        for p in range(4):
            a.ext(srd(SW[p], 52, t0, f"s_sub_u32 @, {1024*8192 + (p & 1) * 1024}, s{t0}"))
            if p & 1: a.ext(back1k(SW[p]))
            if p < 3: a(f"s_add_u32 s{t0}, s{t0}, 64")
        if s.opt.get("now"):
            for p in range(4): a(f"s_mov_b32 s{SW[p]+2}, 0")
        if s.opt.get("nox"): a(f"s_mov_b32 s{SX+2}, 0")
        for par in range(2):
            fv, fx = vm_plan(par)
            for g in range(128):
                for t in fx.get(g, []): a(t)
                if fx.get(g) and "m0" in fx[g][-1]: a("s_nop 0")
                for t in fv.get(g, []): a(t)
        s.stamp(1, True)
        s.npf2 = 0
        if pf0 in (-1, 3): a(post2); s.npf2 = 1
        a.ext(srd(SWS, pWS, None, f"s_mov_b32 @, {WS_BYTES}"))
        a.ext(srd(SDBG, pDBG, None, f"s_mov_b32 @, 0"))
        s.pf_setup()
        a(f"""
        s_mul_i32 s{t0}, s{sH}, {KVS}
        s_lshl_b32 s{t1}, s{sB}, 17
        s_add_u32 s{t0}, s{t0}, s{t1}
        s_add_u32 s{t0}, s{t0}, {KV_OFF}
        s_lshl_b32 s{t1}, s{sW}, 12          ; K: 4w KB
        s_lshl_b32 s{t2}, s{sW}, 13          ; V: 16K + 8(w-2) KB
        s_cmp_lt_u32 s{sW}, 2
        s_cselect_b32 s{t1}, s{t1}, s{t2}
        s_cselect_b32 s{t2}, 2, 1
        s_lshl_b32 s{t2}, s{t2}, 12
        s_add_u32 s{sSt}, s{t0}, s{t1}
        s_add_u32 s{sSt+4}, s{sSt}, s{t2}
        """)
        for m in range(1, 4):
            a(f"s_add_u32 s{sSt+m}, s{sSt}, {m*32768}\ns_add_u32 s{sSt+4+m}, s{sSt+4}, {m*32768}")
        a(f"""
        v_and_b32 v{vT}, 15, v1
        v_lshrrev_b32 v{vT+1}, 1, v{vT}
        v_xor_b32 v{vT+1}, v{vT+1}, v{vT+2}
        v_lshlrev_b32 v{vT}, 7, v{vT}
        v_add_u32 v{vT}, 131072, v{vT}
        v_lshl_add_u32 v{vXr}, v{vT+1}, 4, v{vT}
        v_xor_b32 v{vT+1}, 4, v{vT+1}
        v_lshl_add_u32 v{vXr+1}, v{vT+1}, 4, v{vT}
        v_bfe_u32 v{vT}, v1, 2, 2
        v_and_b32 v{vT+1}, 1, v{vT+2}
        v_lshl_add_u32 v{vT}, v{vT+1}, 3, v{vT}
        v_lshlrev_b32 v{vT}, 6, v{vT}
        v_lshl_add_u32 v{vT}, v{vT+3}, 3, v{vT}
        v_lshrrev_b32 v{vT+4}, 5, v1
        v_lshl_add_u32 v{vT}, v{vT+4}, 11, v{vT}
        v_add_u32 v{vT}, s{sWreg}, v{vT}
        v_lshl_add_u32 v{vWr}, v{vT+1}, 5, v{vT}
        v_xor_b32 v{vWr+1}, 32, v{vWr}
        v_add_u32 v{vWr+2}, 65536, v{vWr}
        v_add_u32 v{vWr+3}, 65536, v{vWr+1}
        s_mov_b32 s{sStg}, 0
        v_lshrrev_b32 v{vT+1}, 2, v1
        v_mul_u32_u24 v{vT+1}, 3584, v{vT+1}
        v_add_u32 v{vWG}, v{vT+1}, v{vWG}
        v_add_u32 v{vWG+1}, {16*3584-2048}, v{vWG}
        s_lshl_b32 s{t0}, 1, s{sH}
        v_mov_b32 v{vFd}, s{t0}
        s_lshl_b32 s{t0}, s{sB}, 2
        v_lshlrev_b32 v{vFo}, 10, v0
        v_add_u32 v{vFo}, s{t0}, v{vFo}
        s_and_b32 s{sFlagStg}, s{sB}, 7
        s_add_u32 s{sFlagStg}, s{sFlagStg}, 2
        """)
        for r in range(4): a(f"v_accvgpr_write_b32 a{192+r}, 0")
        a("s_nop 1")
        Z = lambda d: a(f"v_mfma_f32_32x32x16_bf16 {d}, a[192:195], a[192:195], 0")
        for r in range(64, 256, 16): Z(vr(r, 16))
        Z(ar(0, 16)); Z(ar(16, 16))
        n2 = len(canon(0)) + len(canon(1)) + s.npf + s.npf2
        a(f"s_waitcnt vmcnt({n2})")
        s.stamp(2, True)
        ln2(a, 32, 40, vT, t0)
        s.stamp(3, True)
        a(f"buffer_store_dwordx4 v[32:35], v22, {sr(SWS,4)}, s{t3} offen sc1")
        a(f"buffer_store_dwordx4 v[36:39], v22, {sr(SWS,4)}, s{t3} offen offset:2048 sc1")
        a(f"v_lshlrev_b32 v{vT}, 2, v0\nv_mov_b32 v{vT+1}, 0\ns_lshl_b32 s{t0}, s2, 5\ns_add_u32 s{t0}, s{t0}, {FLAG_OFF}\ns_add_u32 s{STMP+2}, s{t0}, 32")
        a(f"s_mov_b32 s{STMP}, s{pWS}\ns_mov_b32 s{STMP+1}, s{pWS+1}\nbuffer_store_dword v{vT+1}, v{vT}, {sr(STMP,4)}, s{t0} offen sc1")
        Z(vr(48, 16))
        a(f"v_and_b32 v{vPoll+1}, 15, v1\nv_lshlrev_b32 v{vPoll+1}, 2, v{vPoll+1}")
        a(f"s_waitcnt vmcnt({3 + n2 - s.npf - 1 - max(i for i, x in enumerate(canon(0)) if x == 'P10')})\ns_barrier")
        s.stamp(0)
        for r in rdW(0, 0) + rdX(0) + rdW(0, 1): a(r[0])
        Z(vr(32, 16))
        a("s_waitcnt lgkmcnt(0)\ns_barrier\ns_nop 7")
    def pf_first(s):
        pre = f"""
        s_cmp_lt_u32 s{sW}, 2
        s_cselect_b32 s{t0}, 2, 1
        s_cselect_b32 s{t2}, 3, 1
        s_cselect_b32 s3, 13, 11
        v_lshrrev_b32 v{vT+5}, s{t0}, v1
        v_and_b32 v{vT+6}, s{t2}, v1
        v_lshlrev_b32 v{vT+6}, 7, v{vT+6}
        v_lshlrev_b32 v{vPf}, s3, v{vT+5}
        v_add_u32 v{vPf}, v{vPf}, v{vT+6}
        s_lshl_b32 s{SPF+2}, s{t0}, 22
        s_mov_b32 s{SPF+3}, 0x20000
        s_lshl_b32 s{sPf}, s{sB}, 16           ; W: 8b rows
        s_lshl_b32 s{t0}, s{sH}, 9
        s_add_u32 s{sPf}, s{sPf}, s{t0}
        s_lshl_b32 s{t0}, s{sB}, 1
        s_lshr_b32 s{t2}, s{sH}, 3
        s_add_u32 s{t0}, s{t0}, s{t2}
        s_lshl_b32 s{t0}, s{t0}, 1
        s_add_u32 s{t0}, s{t0}, s{sW}
        s_sub_u32 s{t0}, s{t0}, 2
        s_lshl_b32 s{t0}, s{t0}, 16
        s_movk_i32 s{t2}, 256
        s_cmp_lt_u32 s{sW}, 2
        s_cselect_b32 s{sPf}, s{sPf}, s{t0}
        s_cselect_b32 s{sPfStg}, {128*8192}, s{t2}
        s_cselect_b32 s{t0}, 32, 64
        v_cmp_gt_u32 s[{STMP}:{STMP+1}], s{t0}, v1
        s_add_u32 s{sPfStg}, s{sPfStg}, s{sPf}
        s_nop 0
        v_cndmask_b32 v{vPf}, v{vT}, v{vPf}, s[{STMP}:{STMP+1}]
        """
        post = f"""
        s_cmp_lt_u32 s{sW}, 2
        s_cselect_b32 s{SPF}, s{pWUK}, s{pC}
        s_cselect_b32 s{SPF+1}, s{pWUK+1}, s{pC+1}
        s_cmp_eq_u32 s{sW}, 1
        s_cselect_b32 s{SPF}, s{pWUV}, s{SPF}
        s_cselect_b32 s{SPF+1}, s{pWUV+1}, s{SPF+1}
        buffer_load_dword v{vT+7}, v{vPf}, {sr(SPF, 4)}, s{sPf} offen
        """
        post2 = f"buffer_load_dword v{vT+7}, v{vPf}, {sr(SPF, 4)}, s{sPfStg} offen"
        return pre, post, post2
    def pf_setup(s):
        a = s.a
        a(f"""
        s_and_b32 s{t0}, s{sB}, 7
        s_sub_u32 s{sPfStg}, s{t0}, 1
        s_max_i32 s{sPfStg}, s{sPfStg}, 0
        s_lshl_b32 s{t0}, s{t0}, 1
        s_lshr_b32 s{t1}, s{sB}, 3
        s_add_u32 s{t0}, s{t0}, s{t1}
        s_lshl_b32 s{t0}, s{t0}, 4
        s_add_u32 s{t0}, s{t0}, s{sH}
        s_lshl_b32 s{t0}, s{t0}, 2
        s_add_u32 s{t0}, s{t0}, s{sW}          ; u
        s_bitcmp1_b32 s{t0}, 0
        s_cselect_b32 s{SPF}, s{pWUV}, s{pWUK}
        s_cselect_b32 s{SPF+1}, s{pWUV+1}, s{pWUK+1}
        s_lshr_b32 s{sPf}, s{t0}, 1            ; (u-128)/2 + 64
        s_cmp_lt_u32 s{t0}, 128
        s_cselect_b32 s{SPF}, s{pC}, s{SPF}
        s_cselect_b32 s{SPF+1}, s{pC+1}, s{SPF+1}
        s_cselect_b32 s{sPf}, s{t0}, s{sPf}
        """)
        st = 512
        for p, n in ((pWQ, 112), (pWG, 49), (pWU, 49), (pWO, 112), (pWD, 49)):
            a(f"s_sub_u32 s{t1}, s{t0}, {st}\ns_cselect_b32 s{SPF}, s{SPF}, s{p}\ns_cselect_b32 s{SPF+1}, s{SPF+1}, s{p+1}\ns_cselect_b32 s{sPf}, s{sPf}, s{t1}")
            st += n
        a(f"""
        s_lshl_b32 s{sPf}, s{sPf}, 15
        s_add_u32 s{sPfz}, s{sPf}, 32768
        s_cmp_lt_u32 s{t0}, {st}
        s_cselect_b32 s{sPfz}, s{sPfz}, 0
        v_lshlrev_b32 v{vPf}, 9, v1
        """)
        if s.opt.get("nopf1"): a(f"s_mov_b32 s{sPfz}, 0")
    def lncheck(s, tag):
        a, N = s.a, s.N
        a(f"""
        v_cmp_ne_u32 vcc, 0xffff, v{vPoll}
        s_mov_b32 s{SX}, s{pWS}
        s_mov_b32 s{SX+1}, s{pWS+1}
        s_lshl_b32 s{sXs}, s{sB}, 18
        s_cbranch_vccz {N}_go{tag}
        s_mov_b32 s{t1}, {SPINMAX}
        s_mov_b32 s{SDBG+2}, 256
        """)
        a.label(f"{N}_spin{tag}")
        a(f"""
        s_sub_u32 s{t1}, s{t1}, 1
        s_cbranch_scc1 {N}_go{tag}
        {POLL}
        s_waitcnt vmcnt(0)
        v_cmp_ne_u32 vcc, 0xffff, v{vPoll}
        s_cbranch_vccnz {N}_spin{tag}
        """)
        a.label(f"{N}_go{tag}")
    def switch(s):
        J = lambda l: "\n".join(l)
        r = [f"s_lshl_b32 s{t0}, s{sH}, 8", f"s_lshl_b32 s{t1}, s{sW}, 6", f"s_add_u32 s{t0}, s{t0}, s{t1}",
             f"s_sub_u32 s{t1}, {448*3584}, s{t0}", f"s_add_u32 s{t2}, s{t1}, 1024",
             J([f"s_cmp_lt_u32 s{sH}, 14", f"s_cselect_b32 s{SW[0]+2}, s{t1}, 0", f"s_cselect_b32 s{SW[1]+2}, s{t2}, 0"]),
             J(srd(SW[0], pWG, t0, "")[:2]), J(srd(SW[1], pWU, t0, "")[:2]), J(back1k(SW[1])), f"s_mov_b32 s{sWa}, 0",
             f"s_lshl_b32 s{t0}, s{t0}, 1", J(srd(SW[2], pWQ, t0, "")[:2]), f"s_sub_u32 s{SW[2]+2}, {448*8192}, s{t0}",
             f"s_add_u32 s{t0}, s{t0}, 64", J(srd(SW[3], pWQ, t0, "")[:2]), J(back1k(SW[3])), f"s_sub_u32 s{SW[3]+2}, {448*8192+1024}, s{t0}",
             f"s_mov_b32 s{sWb}, 0"]
        return [(3, x) for x in r]
    def epiK(s):
        v = []
        for n in range(8): v += packA(acc(0, n), acc(1, n), 21 + 2 * n)
        for p in (1, 2):
            for n in range(8):
                v += packA(acc(2 * p, n), acc(2 * p + 1, n), 32 * p + 21 + 2 * n) + toStash(STASH(p - 1, n & 1, n >> 1), acc(2 * p, n), 0)
        st1 = [store(vr(acc(0, n), 4), n & 1, n >> 1, 0, SWS, s.pol) for n in range(8)]
        v2 = []
        for n in range(8):
            T = vT + 4 * (n & 1)
            v2 += fromAcc(T, n, 3) + packA(acc(6, n), T, 3)
        st2 = [store(vr(acc(6, n), 4), n & 1, n >> 1, 3072, SWS, s.pol) for n in range(8)]
        return v, st1, v2, st2
    def epiV(s):
        v = []
        for o in (0, 3, 1, 2, 4, 5, 6):
            for m in range(4):
                g = 16 * o + 4 * m + 8
                A, B = acc(o, 2 * m), acc(o, 2 * m + 1)
                if o in (0, 3): v += [x + ("hi",) for x in packB(A, B, g)]
                elif o == 4: v += packB(A, B, g)
                else: v += packA(A, B, g) + toStash(STASH((o & 3) - 1, o >> 2, m), A, g)
        st1 = [store(vr(acc(o, 2 * m + 1), 4), 0, m, o * 1024, SWS, s.pol) for o in (0, 3) for m in range(4)]
        v2 = []
        for m in range(4):
            v2 += fromAcc(vT, 2 * m, 3) + fromAcc(vT + 4, 2 * m + 1, 3) + packTo(acc(6, 4 + m), vT, vT + 4, 3)
        st2 = [store(vr(acc(4, 2 * m + 1), 4), 1, m, 0, SWS, s.pol) for m in range(4)] + \
              [store(vr(acc(6, 4 + m), 4), 1, m, 3072, SWS, s.pol) for m in range(4)]
        return v, st1, v2, st2
    def ffn(s, n, g, srdH):
        G = [acc(0, n) + r for r in range(4)] + [acc(1, n) + r for r in range(4)]
        U = [acc(2, n) + r for r in range(4)] + [acc(3, n) + r for r in range(4)]
        v = [(g, f"v_mul_f32 v{u}, v{u}, v{x}", 1) for u, x in zip(U, G)]
        v += [(g, f"v_mul_f32 v{x}, s{t3}, v{x}", 1) for x in G]
        v += [(g, f"v_exp_f32 v{x}, v{x}", 2) for x in G]
        v += [(g, f"v_add_f32 v{x}, 1.0, v{x}", 1) for x in G]
        v += [(g, f"v_rcp_f32 v{x}, v{x}", 2) for x in G]
        v += [(g, f"v_mul_f32 v{u}, v{u}, v{x}", 1) for u, x in zip(U, G)]
        v += packA(acc(2, n), acc(3, n), g)
        v += [(g, f"s_add_u32 s{t2}, s{t0}, {n * 56 * 1024}\nbuffer_store_dwordx4 {vr(acc(2, n), 4)}, v{vSt}, {sr(srdH, 4)}, s{t2} offen {s.pol}", 2)]
        return v
    def body(s):
        a, N = s.a, s.N
        s.prologue()
        a(f"s_cmp_lt_u32 s{sW}, 2\ns_cbranch_scc1 {N}_N0")
        SG = s.opt.get("SG", [42, 48, 54, 66, 78, 84, 90, 94])
        cx = {25: [f"s_cmp_eq_u32 s{sStg}, s{sFlagStg}"], 26: [f"s_cselect_b32 s{SDBG+2}, 256, 0"],
              78: [f"s_cmp_eq_u32 s{sStg}, s{sPfStg}"], 79: [f"s_cselect_b32 s{SPF+2}, s{sPfz}, 0"]}
        cv = {27: [f"buffer_atomic_or v{vFd}, v{vFo}, {sr(SDBG,4)}, 0 offen sc1"], **{85 + 2 * k: [PF(k)] for k in range(4)}}
        for tag, swap in (("V", True), ("N", False)):
            a(".p2align 6")
            a.label(f"{N}_{tag}0")
            s.stage(0, swap, seed=True, xfx={**cx, 28: [f"s_cmp_eq_u32 s{sStg}, 12"], 29: [f"s_cselect_b32 s{SDBG+2}, 256, 0"]}, xfv={**cv, 30: [POLL]})
            s.stage(1, swap, xfx={**cx, 127: [f"s_cmp_lg_u32 s{sStg}, 14"]}, xfv=cv)
            a(f"s_cbranch_scc1 {N}_{tag}0")
            a.label(f"{N}_last{tag}")
            s.lncheck(tag)
            s.stage(0, swap, dma=2, scal=s.switch())
            s.stamp(1)
            v, st1, v2, st2 = s.epiV() if swap else s.epiK()
            left = s.stage(1, swap, dma=2, valu=v, stores=dict(zip(SG, st1)), carry=True)
            s.stage(0, False, dma=2, first=True, valu=left + v2, stores=dict(zip(SG, st2)))
            s.stamp(2)
            if tag == "V": a(f"s_branch {N}_T2")
            a.label(f"{N}_end{tag}")
        a.label(f"{N}_T2")
        cnt = s.opt.get("stcnt", [4, 3, 3, 3, 3]); k = 0
        for i in range(5):
            g = [27, 81, 87, 93, 60, 48, 42, 54][:cnt[i]]
            s.stage((i + 1) & 1, dma=2 if i < 4 else 0, stores={x: stash_store(k + j, s.pol) for j, x in enumerate(g)})
            k += cnt[i]
        assert k == 16
    def paths(s):
        N = s.N
        return [[(N, f"{N}_V0")] + [(f"{N}_{t}0", f"{N}_last{t}")] * 7 + [(f"{N}_go{t}", f"{N}_end{t}"), (f"{N}_T2", f"{N}_last2")] for t in "VN"]

def gen_k1(name="proj_kernel", opt=None):
    opt = opt or {}
    a = Asm(); N = name
    P = P1(a, N, opt)
    a(f".p2align 8\n.globl {N}\n.type {N},@function")
    a.label(N)
    a(f"s_cmp_ge_u32 s2, 256\ns_cbranch_scc1 {N}_done")
    if opt.get("stamp"): a(f"s_memtime s[{sTm}:{sTm+1}]\ns_memrealtime s[{sTm+10}:{sTm+11}]")
    P.body()
    a.label(f"{N}_last2")
    P.stamp(3)
    a(f"""
    s_mul_i32 s{t0}, s{sB}, {8*56}
    s_lshl_b32 s{t1}, s{sH}, 2
    s_add_u32 s{t0}, s{t0}, s{t1}
    s_add_u32 s{t0}, s{t0}, s{sW}
    s_lshl_b32 s{t0}, s{t0}, 10
    s_add_u32 s{t0}, s{t0}, {H_OFF}
    s_lshl_b32 s{t1}, s{sH}, 20
    s_lshl_b32 s{t2}, s{sB}, 16
    s_add_u32 s{t1}, s{t1}, s{t2}
    s_lshl_b32 s{t2}, s{sW}, 11
    s_add_u32 s{t1}, s{t1}, s{t2}
    s_add_u32 s{t1}, s{t1}, {Q_OFF}
    s_mov_b32 s{t3}, 0x{f32hex(-16.0)}
    s_cmp_lt_u32 s{sH}, 14
    s_cselect_b32 s{STMP+2}, s{SWS+2}, 0
    s_mov_b32 s{STMP}, s{pWS}
    s_mov_b32 s{STMP+1}, s{pWS+1}
    """)
    def qst(n, p):
        return [(0, f"s_add_u32 s{t2}, s{t1}, {(n & 3) * 16384 + (n >> 2) * 8192}\nbuffer_store_dwordx4 {vr(acc(4 + 2 * p, n), 4)}, v{vSt}, {sr(SWS, 4)}, s{t2} offen offset:{p * 1024} {P.pol}", 2)]
    v = P.ffn(0, 53, STMP) + P.ffn(1, 55, STMP)
    for n in range(8): v += packA(acc(4, n), acc(5, n), 85 + 2 * n) + qst(n, 0)
    for n in range(2, 4): v += P.ffn(n, 67, STMP)
    for n in range(8):
        T = vT + 4 * (n & 1)
        v += fromAcc(T, n, 200) + packA(acc(6, n), T, 200) + qst(n, 1)
    for n in range(4, 8): v += P.ffn(n, 67, STMP)
    P.stage(0, False, valu=v, dma=0, nxt=False)
    a.label(f"{N}_fin")
    a(f"s_lshl_b32 s{t2}, s2, 2\ns_add_u32 s{t2}, s{t2}, {F1_OFF}\nv_mov_b32 v24, 1\nbuffer_store_dword v24, off, {sr(SWS,4)}, s{t2} sc1")
    if opt.get("stamp"):
        a(f"""
        s_memtime s[52:53]
        s_lshl_b32 s{t2}, s2, 2
        s_add_u32 s{t2}, s{t2}, s{sW}
        s_lshl_b32 s{t2}, s{t2}, 8
        s_add_u32 s{t2}, s{t2}, {STAMP_OFF + 262144}
        v_subrev_u32 v22, s{sTm}, v6
        v_lshlrev_b32 v23, 2, v1
        buffer_store_dword v22, v23, {sr(SWS,4)}, s{t2} offen
        s_waitcnt vmcnt(0)
        s_memtime s[4:5]
        s_memrealtime s[6:7]
        s_waitcnt lgkmcnt(0)
        s_sub_u32 s{t0}, s4, s{sTm}
        s_sub_u32 s{t1}, s6, s{sTm+10}
        v_mov_b32 v24, s{t0}
        v_mov_b32 v25, s{t1}
        v_mov_b32 v26, s{sTm+10}
        v_mov_b32 v27, s6
        s_lshl_b32 s{t2}, s2, 6
        s_lshl_b32 s{t3}, s{sW}, 4
        s_add_u32 s{t2}, s{t2}, s{t3}
        s_add_u32 s{t2}, s{t2}, {STAMP_OFF}
        v_mov_b32 v28, 0
        s_mov_b64 exec, 1
        buffer_store_dwordx4 v[24:27], v28, {sr(SWS,4)}, s{t2} offen
        """)
        for i in range(4): a(f"s_sub_u32 s{t0}, s{sTm+2+2*i}, s{sTm}\nv_mov_b32 v{4+i}, s{t0}")
        a(f"s_add_u32 s{t2}, s{t2}, 65536\nbuffer_store_dwordx4 v[4:7], v28, {sr(SWS,4)}, s{t2} offen")
        a(f"s_sub_u32 s{t0}, s52, s{sTm}\nv_mov_b32 v8, s{t0}\ns_add_u32 s{t2}, s{t2}, 65536\nbuffer_store_dword v8, v28, {sr(SWS,4)}, s{t2} offen")
    a.label(f"{N}_done")
    a("s_endpgm")
    import trace
    for p in P.paths(): print("trace bad:", trace.check(a.text(), p + [(f"{N}_last2", f"{N}_fin")]))
    return a.text(), kernel_desc(N, 512, 102, 256), f"; @launch kernel={N} grid=(256,1,1) block=(256,1,1) lds=163840"
```

```python
import mb_clock
from mb_clock import *
T = {}
def mo(t):
    d = 32 + 4 * ((t // 8) % 8)
    return f"v_mfma_f32_16x16x32_bf16 v[{d}:{d+3}], a[{64+4*(t%16)}:{67+4*(t%16)}], v[{128+8*(t%16)}:{131+8*(t%16)}], v[{d}:{d+3}]"
def mo32(t):
    d = 32 + 16 * ((t // 16) % 2)
    return f"v_mfma_f32_32x32x16_bf16 v[{d}:{d+15}], a[{64+4*(t%16)}:{67+4*(t%16)}], v[{128+8*(t%16)}:{131+8*(t%16)}], v[{d}:{d+15}]"
b16 = [mo(t) for t in range(96)]
b32 = [mo32(t) for t in range(48)]
tr = lambda i: f"ds_read_b64_tr_b16 a[{192+2*(i%16)}:{193+2*(i%16)}], v27 offset:{(i*512)%65536}"
trv = lambda i: f"ds_read_b64_tr_b16 v[{80+2*(i%16)}:{81+2*(i%16)}], v27 offset:{(i*512)%65536}"
mul = lambda i: f"v_mul_f32 v{112+(i%8)}, v{112+(i%8)}, v20"
sal = lambda i: f"s_add_u32 s{40+(i%4)}, s{40+(i%4)}, 1"
W = "s_waitcnt lgkmcnt(12)"
pre = ["v_lshrrev_b32 v27, 1, v3"]
T["a_tr"] = pre + with_fill(b16, lambda i: [tr(i)])
T["b_w_tr"] = pre + with_fill(b16, lambda i: [W, tr(i)])
T["c_tr_mul"] = pre + with_fill(b16, lambda i: [tr(i), mul(i)])
T["d_w_tr_mul"] = pre + with_fill(b16, lambda i: [W, tr(i), mul(i)])
T["e_w_mul_tr"] = pre + with_fill(b16, lambda i: [W, mul(i), tr(i)])
T["f_alt"] = pre + with_fill(b16, lambda i: [W, tr(i), tr(i+1)] if i % 2 else [sal(i), mul(i), mul(i+1)])
T["g_trv_mul"] = pre + with_fill(b16, lambda i: [W, trv(i), mul(i)])
T["h_m32"] = pre + with_fill(b32, lambda i: [W, tr(2*i), mul(2*i), sal(i), tr(2*i+1), mul(2*i+1)])
T["i_m32_3"] = pre + with_fill(b32, lambda i: [W, tr(2*i), mul(2*i), tr(2*i+1), mul(2*i+1), mul(2*i+2)])
T["j_half"] = pre + with_fill(b16, lambda i: [W, tr(i), mul(i)] if i % 2 else [tr(i)])
T["k_sal_tr_mul"] = pre + with_fill(b16, lambda i: [sal(i), tr(i), mul(i)])
T["l_tr_w_mul"] = pre + with_fill(b16, lambda i: [tr(i), W, mul(i)])
for k, b in T.items():
    open(f"mi_{k}.s", "w").write(build([gen("mb_kernel", b, 40)]))
print(" ".join(f"mi_{k}.s" for k in T))
print(json.dumps([f"dev/mi_{k}.s" for k in T]))
```

```python
import sys, json
from asmlib import *
from layout import *
from gen import build

def gen(name, body, iters, src=8):
    a = Asm()
    a(f".p2align 8\n.globl {name}\n.type {name},@function")
    a.label(name)
    a(f"""
    s_cmp_ge_u32 s2, 256
    s_cbranch_scc1 {name}_done
    s_load_dwordx2 s[4:5], s[0:1], {src}
    s_load_dwordx2 s[6:7], s[0:1], 96
    v_lshrrev_b32 v1, 6, v0
    s_nop 0
    v_readfirstlane_b32 s34, v1
    v_lshlrev_b32 v2, 4, v0
    v_and_b32 v3, 63, v0
    v_lshlrev_b32 v3, 4, v3
    s_waitcnt lgkmcnt(0)
    s_mov_b32 s8, s4
    s_mov_b32 s9, s5
    s_mov_b32 s10, 4194304
    s_mov_b32 s11, 0x20000
    s_mov_b32 s20, s6
    s_mov_b32 s21, s7
    s_mov_b32 s22, {WS_BYTES}
    s_mov_b32 s23, 0x20000
    """)
    for i in range(16):
        a(f"s_mov_b32 s12, {i*4096}")
        a(f"buffer_load_dwordx4 a[{4*i}:{4*i+3}], v2, s[8:11], s12 offen")
    a("s_lshl_b32 s13, s34, 10")
    for i in range(16):
        a(f"s_add_u32 m0, s13, {i*4096}")
        a(f"s_mov_b32 s12, {65536+i*4096}")
        a(f"buffer_load_dwordx4 v2, s[8:11], s12 offen lds")
    for i in range(256-32):
        a(f"v_mov_b32 v{32+i}, 0")
    for i in range(64, 256):
        a(f"v_accvgpr_write_b32 a{i}, 0")
    a("s_waitcnt vmcnt(0)\ns_barrier")
    for i in range(4, 28): a(f"v_accvgpr_read_b32 v{i}, a{i}")
    a(f"s_mov_b32 s31, {iters}")
    a("s_memtime s[80:81]\ns_memrealtime s[82:83]\ns_waitcnt lgkmcnt(0)")
    a(".p2align 6")
    a.label(f"{name}_loop")
    a.ext(body)
    a(f"s_sub_u32 s31, s31, 1\ns_cmp_lg_u32 s31, 0\ns_cbranch_scc1 {name}_loop")
    a(f"""
    s_memtime s[84:85]
    s_memrealtime s[86:87]
    s_waitcnt lgkmcnt(0)
    s_sub_u32 s72, s84, s80
    s_sub_u32 s73, s86, s82
    v_mov_b32 v24, s72
    v_mov_b32 v25, s73
    v_mov_b32 v26, s82
    v_mov_b32 v27, s86
    s_lshl_b32 s74, s2, 6
    s_lshl_b32 s75, s34, 4
    s_add_u32 s74, s74, s75
    s_add_u32 s74, s74, {STAMP_OFF}
    v_mov_b32 v28, 0
    s_mov_b64 exec, 1
    buffer_store_dwordx4 v[24:27], v28, s[20:23], s74 offen
    """)
    a.label(f"{name}_done")
    a("s_endpgm")
    return a.text(), kernel_desc(name, 512, 100, 256), f"; @launch kernel={name} grid=(256,1,1) block=(256,1,1) lds=65536"

def m32(d, A, B, f="v"): return f"v_mfma_f32_32x32x16_bf16 {f}[{d}:{d+15}], a[{4*A}:{4*A+3}], a[{4*B}:{4*B+3}], {f}[{d}:{d+15}]"
def m16(d, A, B, f="v"): return f"v_mfma_f32_16x16x32_bf16 {f}[{d}:{d+3}], a[{4*A}:{4*A+3}], a[{4*B}:{4*B+3}], {f}[{d}:{d+3}]"
T = {}
def acc32(t): return 32 + 16 * (t % 12)
T["a_m32_4x3"] = [m32(acc32(t), (t % 4) + 8*((t//12)&1), 4 + (t // 4) % 3 + 8*((t//12)&1)) for t in range(48)]
T["b_m32_fresh"] = [m32(acc32(t), (2*t) % 16, (2*t+1) % 16) for t in range(48)]
T["c_m32_chain"] = [m32(32 + 16*((t//16)%2), (2*t) % 16, (2*t+1) % 16) for t in range(48)]
T["d_m16_8x6"] = [m16(32 + 4 * (t % 48), (t % 8), 8 + (t // 8) % 6) for t in range(96)]
T["e_m16_fresh"] = [m16(32 + 4 * (t % 48), (2*t) % 16, (2*t+1) % 16) for t in range(96)]
T["f_m32_agpr"] = [m32(64 + 16 * (t % 12), (t % 4) + 8*((t//12)&1), 4 + (t // 4) % 3 + 8*((t//12)&1), "a") for t in range(48)]
def with_fill(ms, fill):
    o = []
    for i, m in enumerate(ms):
        o.append(m); o.extend(fill(i))
    return o
base = T["a_m32_4x3"]
T["g_duty80"] = with_fill(base, lambda i: ["s_nop 7"])
T["h_duty67"] = with_fill(base, lambda i: ["s_nop 9"])
T["i_duty50"] = with_fill(base, lambda i: ["s_nop 13"])
T["j_lds1"] = with_fill(base, lambda i: [f"ds_read_b128 a[{192+4*(i%8)}:{195+4*(i%8)}], v3 offset:{(i*1024)%65536}"] + (["s_waitcnt lgkmcnt(4)"] if i%4==3 else []))
T["k_lds05"] = with_fill(base, lambda i: ([f"ds_read_b128 a[{192+4*(i%8)}:{195+4*(i%8)}], v3 offset:{(i*1024)%65536}"] if i%2 else []) + (["s_waitcnt lgkmcnt(4)"] if i%4==3 else []))
T["l_valu2"] = with_fill(base, lambda i: [f"v_exp_f32 v{228+(i%8)}, v{4+(i%8)}", f"v_add_f32 v{240+(i%8)}, v{12+(i%8)}, v{240+(i%8)}"])
b16 = T["d_m16_8x6"]
T["m_m16_lds05"] = with_fill(b16, lambda i: ([f"ds_read_b128 a[{192+4*(i%8)}:{195+4*(i%8)}], v3 offset:{(i*1024)%65536}"] if i%4==1 else []) + (["s_waitcnt lgkmcnt(4)"] if i%8==7 else []))
for k, b in T.items():
    open(f"mb_{k}.s", "w").write(build([gen("mb_kernel", b, 40)]))
print(" ".join(f"mb_{k}.s" for k in T))
import json
print(json.dumps([f"dev/mb_{k}.s" for k in T]))
```

```python
from asmlib import *
from layout import *
from k0 import f32hex
from k1n import pX, pWO, pWD, pOUT, pWS, sW, sH, sB, t0, t1, t2, t3, SWS, sTm

SLOT = 32768
RING = 5 * SLOT
THR = 2.0 ** 16
NEG = -1.0e30
vDma, vF0, vL16, vRd = 2, 3, 4, 5
vWo = 6
vTl, vTc = 10, 14
vT0, vT1 = 18, 19
vL = 20
vLs = 24
vT2, vT3 = 26, 27
vPm = 28
vE = 32
def NEGM(qs): return 40 + 4 * qs
def CM(kt): return 48 + 4 * kt
def MBK(k, kt): return 56 + 8 * k + 4 * kt
def P(p, qs): return 72 + 8 * p + 4 * qs
def S(p, kt, qs): return 88 + 16 * p + 8 * kt + 4 * qs
vOut = 120
vG, vRs, vHp = 120, 124, 126
def OB(dk, qs): return 128 + (dk * 2 + qs) * 8
def O(dt, qs): return OB(dt >> 1, qs) + 4 * (dt & 1)
def Q(qs, dk): return ar((qs * 8 + dk) * 4, 4)
def F(f, half=None):
    b = 64 + 4 * (f % 16)
    return ar(b, 4) if half is None else ar(b + 2 * half, 2)
SG, SX2, SO = 4, 8, 12
sW4K = 67
sWrW, sWrap, sSrc, sStep, sHalf, sSrcEnd, sRd, sCnt = range(16, 24)
sSeg, sComb, sRet, sI, sN, sThr, sPart, sY = range(28, 36)
sSt0, sSt1, sMask, sSeen = range(36, 40)
sNx, sFl, sFlN, sFlIt, sKVh, sPoll, sLd, sHo, sHf, sSpin = 70, 73, 74, 75, 77, 78, 79, 80, 81, 82
STP = [42, 44, 46, 48, 52, 54, 56, 62]

def rdK(f): return (f"ds_read_b128 {F(f)}, v{vRd} offset:{16384 + f * 1024} ;R S@1:r", f)
def rdV(f): return (f"ds_read_b128 {F(f)}, v{vRd} offset:{(f - 16) * 1024} ;R S@0:r", f)
def rdKV(f): return rdK(f) if f < 16 else rdV(f)
def rdW(f):
    mt, dk = (f >> 3) & 3, f & 7
    return [(f"ds_read_b64_tr_b16 {F(f, t)}, v{vTc + mt} offset:{(32 * dk + 16 * t) * 128}", 100 + f) for t in range(2)]
def mm(d, A, B, c): return f"v_mfma_f32_16x16x32_bf16 {vr(d,4)}, {A}, {B}, {c}"
def qk(pn, qss, cinit):
    m = []
    for kt in range(2):
        for qs in qss:
            for dk in range(8):
                d = S(pn, kt, qs)
                m.append((mm(d, F(kt * 8 + dk), Q(qs, dk), cinit(kt, qs) if dk == 0 else vr(d, 4)), kt * 8 + dk))
    return m
def pv(p, qss):
    return [(mm(O(dt, qs), F(16 + dt), vr(P(p, qs), 4), vr(O(dt, qs), 4)), 16 + dt) for dt in range(16) for qs in qss]
def expw(p, qs, g0=0):
    src = [S(p, kt, qs) + r for kt in range(2) for r in range(4)]
    ls = vLs + qs
    v = []
    for k in range(8):
        v.append((g0, f"v_exp_f32 v{vE + k}, v{src[k]}", 2))
        if k == 1: v.append((g0, f"v_add_f32 v{ls}, v{vE}, v{vE + 1}", 1))
        elif k > 1: v.append((g0, f"v_add_f32 v{ls}, v{ls}, v{vE + k}", 1))
    for r in range(4):
        v.append((g0, f"v_cvt_pk_bf16_f32 v{P(p, qs) + r}, v{vE + 2 * r}, v{vE + 2 * r + 1}", 1))
    return v
def check_ops(): return [(0, f"v_max_f32 v{vT0}, v{vLs}, v{vLs + 1}", 1), (0, f"v_cmp_lt_f32 vcc, s{sThr}, v{vT0}", 1)]
def lacc(qss): return [(0, f"v_add_f32 v{vL + qs}, v{vL + qs}, v{vLs + qs}", 1) for qs in qss]
def cm_ops(qs, k): return [(0, f"v_add_f32 v{CM(kt) + r}, v{NEGM(qs)}, v{MBK(k, kt) + r}", 1) for kt in range(2) for r in range(4)]
def dma(h, vb=vG, same=False):
    return [f"buffer_load_dwordx4 v{vb + (0 if same else j)}, {sr(SG, 4)}, s{sSrc if h == 0 else t3} offen offset:{j * 1024} sc1 lds ;D S@{h}" for j in range(4)]
def m0set(h):
    return [f"s_mov_b32 m0, s{sWrW}"] if h == 0 else [f"s_add_u32 m0, s{sWrW}, 16384", f"s_add_u32 s{t3}, s{sSrc}, s{sHalf}"]
def adv_wr():
    return [f"s_add_u32 s{sWrW}, s{sWrW}, {SLOT}", f"s_cmp_eq_u32 s{sWrW}, s{sWrap}", f"s_cselect_b32 s{sWrW}, s{sW4K}, s{sWrW} ;AW",
            f"s_add_u32 s{sSrc}, s{sSrc}, s{sStep}"]
def adv_rd(): return [f"s_add_u32 s{sRd}, s{sRd}, {SLOT}", f"s_cmp_eq_u32 s{sRd}, {RING}", f"s_cselect_b32 s{sRd}, 0, s{sRd} ;AS"]
UPD = f"v_add_u32 v{vRd}, s{sRd}, v{vL16} ;AR r"
UPDW = [f"v_add_u32 v{vTc + k}, s{sRd}, v{vTl + k} ;AR {k}" for k in range(4)]
FLAG = f"buffer_store_dword v{vWo + 1}, v{vF0}, {sr(SWS, 4)}, s{sFl} offen sc1 ;FLAG"
A_ENTRY = list(range(10))
B_ENTRY = list(range(16, 26))

class P2:
    def __init__(s, a, N, opt, sch=None):
        s.a, s.N, s.opt = a, N, opt
        s.sch = sch or Sched(a)
        s.sites = {0: [], 1: []}
    def stamp(s, i):
        if s.opt.get("stamp"): s.a(f"s_memtime s[{STP[i]}:{STP[i]+1}]")
    def branch_check(s, p, tag):
        s.sites[p].append(tag)
        s.a(f"s_cbranch_vccnz {s.N}_rare{p}")
        s.a.label(f"{s.N}_ret_{tag}")
    def phaseA(s, p, tag, cinit=None, half=False, expq=1, extra=[], post=[]):
        cinit = cinit or (lambda kt, qs: vr(NEGM(qs), 4))
        s.sch.reset(A_ENTRY)
        mf = qk(p ^ 1, [1] if half else [0, 1], cinit)
        st = 1 if half else 2
        reads = {st * k: [rdKV(10 + k)] for k in range(16)}
        valu = (expw(p, expq) if expq is not None else []) + check_ops() + extra
        dg = [1, 4, 7, 10] if half else [19, 21, 23, 25]
        s.sch.phase(mf, reads, valu, scal=[(0, f"s_mov_b32 s{sRet}, {len(s.sites[p])}")] + [(dg[3], t) for t in adv_wr()],
                    fixed={dg[0] - 1: m0set(1)}, fixedv={g: [d] for g, d in zip(dg, dma(1))})
        s.branch_check(p, tag)
        s.a.ext(post)
    def phaseB(s, p, half=False, accq=(0, 1), expq=0, extra=[], nxt="K", vm=16, post=[], flag=False):
        s.sch.reset(B_ENTRY)
        mf = pv(p, [1] if half else [0, 1])
        st = 1 if half else 2
        reads = {st * k: [rdV(26 + k)] for k in range(6)}
        gb = 5 * st + 1 if not half else 6
        for k in range(10):
            g = st * (6 + k)
            if nxt == "K": reads[g] = [rdK(k)]
            elif nxt == "V": reads[g] = [(rdV(16 + k)[0], 216 + k)]
        valu = lacc(accq) + (expw(p ^ 1, expq, 3 if expq == 1 else 0) if expq is not None else []) + extra
        if nxt is None: valu += [(gb, t, 1) for t in UPDW]
        dg = [8, 10, 12, 14] if half else [13, 17, 21, 25]
        fv = {g: [d] for g, d in zip(dg, dma(0))}
        fv[gb] = [UPD]
        fx = {gb: [f"s_waitcnt vmcnt({vm})", "s_barrier"], dg[0] - 1: m0set(0)}
        if flag: fv[29] = [FLAG]; fx[30] = [f"s_mov_b32 s{sFl}, {NULLO}"]
        for k, t in enumerate(adv_rd()): fx[2 * k] = [t]
        s.sch.phase(mf, reads, valu, scal=[(26, t) for t in post], fixed=fx, fixedv=fv)
    def xl(s, m, op):
        a = s.a
        for sw in ("32", "16"):
            a(f"v_mov_b32 v{vT2}, v{m}\nv_mov_b32 v{vT3}, v{m+1}\ns_nop 0")
            a(f"v_permlane{sw}_swap_b32 v{m}, v{vT2}\nv_permlane{sw}_swap_b32 v{m+1}, v{vT3}")
            a(f"v_{op}_f32 v{m}, v{m}, v{vT2}\nv_{op}_f32 v{m+1}, v{m+1}, v{vT3}")
    def rowmax(s, p):
        a = s.a
        for qs in range(2):
            x = [S(p, kt, qs) + r for kt in range(2) for r in range(4)]
            m = vT0 + qs
            a(f"v_max3_f32 v{m}, v{x[0]}, v{x[1]}, v{x[2]}")
            a(f"v_max3_f32 v{m}, v{m}, v{x[3]}, v{x[4]}")
            a(f"v_max3_f32 v{m}, v{m}, v{x[5]}, v{x[6]}")
            a(f"v_max_f32 v{m}, v{m}, v{x[7]}")
        s.xl(vT0, "max")
    def plain(s, v):
        pt = False
        for x in v:
            if pt and x[2] == 1: s.a("s_nop 0")
            s.a(x[1]); pt = x[2] == 2
    def expw_plain(s, p, qs):
        v = expw(p, qs)
        s.plain([x for x in v if x[2] == 2] + [x for x in v if x[2] == 1])
    def cvt_block(s, b):
        for r in range(4): s.a(f"v_cvt_pk_bf16_f32 v{b+r}, v{b+2*r}, v{b+2*r+1}")
    def zeroO(s, k):
        s.a(f"v_mfma_f32_32x32x16_bf16 {vr(128 + 16 * k, 16)}, {vr(P(1, 1), 4)}, {vr(P(1, 1), 4)}, 0")
    def stream_setup(s):
        ytab = s.opt.get("ytab") or [max(s.opt.get("Y0", 24) - 4 * i, 0) if i < 6 else 0 for i in range(8)]
        assert all(y % 2 == 0 and (y == 0 or y >= 4) for y in ytab) and ytab[7] == 0
        yt = sum((y // 2) << (4 * i) for i, y in enumerate(ytab))
        J = lambda *l: "\n".join(l)
        return [f"s_sub_u32 s{sI}, 15, s{sB}", f"s_min_u32 s{sI}, s{sI}, s{sB}", f"s_lshl_b32 s{sY}, s{sI}, 2", f"s_lshr_b32 s{sY}, {yt}, s{sY}",
                f"s_and_b32 s{sY}, s{sY}, 15", f"s_lshl_b32 s{sY}, s{sY}, 1", f"s_mul_i32 s{sKVh}, s{sH}, {KVS}", f"s_add_u32 s{sKVh}, s{sKVh}, {KV_OFF - 16384}",
                J(f"s_cmp_ge_u32 s{sB}, 8", f"s_cselect_b32 s{sN}, s{sY}, 0"), f"s_lshl_b32 s{sSrc}, s{sN}, 15", f"s_add_u32 s{sSrc}, s{sSrc}, s{sKVh}",
                f"s_add_u32 s{sWrW}, s{sW4K}, {4 * SLOT}", f"s_add_u32 s{sWrap}, s{sW4K}, {RING}", f"s_mov_b32 s{sStep}, {SLOT}", f"s_mov_b32 s{sHalf}, 16384",
                f"s_mov_b32 s{SG}, s{pWS}", f"s_mov_b32 s{SG+1}, s{pWS+1}", f"s_mov_b32 s{SG+2}, {WS_BYTES}", f"s_mov_b32 s{SG+3}, 0x20000"]
    def scal_setup(s):
        J = lambda *l: "\n".join(l)
        u0, u1 = sSt0, sSt1
        return [f"s_lshl_b32 s{u0}, s{sB}, 2", f"s_sub_u32 s{sN}, s{u0}, s{sN}", f"s_add_u32 s{sN}, s{sN}, 4",
                f"s_mov_b32 s{sSrcEnd}, -1", f"s_mov_b32 s{sRd}, {4 * SLOT}", f"s_mov_b32 s{sSeg}, 0", f"s_mov_b32 s{sSeen}, 0", f"s_mov_b32 s{sRet}, 0",
                f"s_mov_b32 s{sThr}, 0x{f32hex(s.opt.get('thr', THR))}", f"s_mov_b32 s{sMask}, 0xffff0000", f"s_min_u32 s{sComb}, s{sY}, 1",
                f"s_lshl_b32 s{u0}, s{sH}, 3", f"s_add_u32 s{u0}, s{u0}, s{sI}", f"s_lshl_b32 s{u0}, s{u0}, 2", f"s_add_u32 s{sPoll}, s{u0}, {F3_OFF}",
                f"s_add_u32 s{u0}, s{u0}, s{sW}", f"s_mul_i32 s{sPart}, s{u0}, {17*1024}", f"s_add_u32 s{sPart}, s{sPart}, {PART_OFF}",
                f"s_mov_b32 s{sFlN}, s{sPoll}",
                f"s_sub_u32 s{u0}, 15, s{sI}", f"s_lshl_b32 s{u1}, s{sH}, 4", f"s_add_u32 s{u1}, s{u1}, s{u0}", f"s_lshl_b32 s{u1}, s{u1}, 2",
                f"s_add_u32 s{u1}, s{u1}, s{sW}", f"s_lshl_b32 s{u1}, s{u1}, 14", f"s_add_u32 s{u1}, s{u1}, {Q_OFF}",
                f"s_lshl_b32 s{u0}, s{u0}, 4", f"s_add_u32 s{u0}, s{u0}, s{sH}", f"s_lshl_b32 s{u0}, s{u0}, 2", f"s_add_u32 s{u0}, s{u0}, {F1_OFF}",
                J(f"s_cmp_ge_u32 s{sB}, 8", f"s_cselect_b32 s{sLd}, s{sPart}, s{u1}", f"s_cselect_b32 s{sPoll}, s{sPoll}, s{u0}"),
                f"s_lshl_b32 s{u0}, s{sH}, 3", f"s_add_u32 s{u0}, s{u0}, s{sW}", f"s_mul_i32 s{u0}, s{u0}, 7", f"s_add_u32 s{u0}, s{u0}, s{sB}",
                f"s_lshl_b32 s{u0}, s{u0}, 13", f"s_add_u32 s{sHo}, s{u0}, {H_OFF}",
                f"s_lshl_b32 s{u0}, s{sH}, 3", f"s_add_u32 s{u0}, s{u0}, s{sB}", f"s_lshl_b32 s{u0}, s{u0}, 3", f"s_add_u32 s{u0}, s{u0}, {F1_OFF}",
                f"s_mul_i32 s{u1}, s{sB}, {256*896}",
                J(f"s_cmp_lt_u32 s{sB}, 7", f"s_cselect_b32 s{sHf}, s{u0}, {NULLO}", f"s_cselect_b32 s{sNx+2}, {256*896}, 0", f"s_cselect_b32 s{u1}, s{u1}, 0"),
                J(f"s_add_u32 s{sNx}, s{pWD}, s{u1}", f"s_addc_u32 s{sNx+1}, s{pWD+1}, 0")]
    def vec_setup(s):
        a = s.a
        a(f"""
        v_lshlrev_b32 v{vL16}, 4, v1
        v_cmp_eq_u32 vcc, 0, v0
        v_mov_b32 v{vF0}, 0x7fffff00
        v_lshrrev_b32 v{vT0}, 3, v0
        v_and_b32 v{vT1}, 7, v{vT0}
        v_and_b32 v{vT0}, 24, v{vT0}
        v_lshl_add_u32 v{vT0}, v{vT0}, 2, v{vT1}
        v_cndmask_b32 v{vF0}, v{vF0}, v0, vcc
        v_mul_u32_u24 v{vT0}, 896, v{vT0}
        v_bfe_u32 v{vT1}, v1, 1, 2
        v_lshrrev_b32 v{vT2}, 4, v1            ; g
        v_xor_b32 v{vT1}, v{vT1}, v{vT2}
        v_lshl_add_u32 v{vT0}, v{vT1}, 5, v{vT0}
        v_and_b32 v{vT1}, 1, v1
        v_lshl_add_u32 v{vWo}, v{vT1}, 4, v{vT0}
        """)
        a(UPD)
        for j in range(1, 4): a(f"v_add_u32 v{vWo+j}, {6144*j}, v{vWo}")
        for j in range(4): a(f"v_mov_b32 v{vG+j}, v{vDma}\nv_mov_b32 v{P(1,1)+j}, 0")
        a(f"""
        v_lshrrev_b32 v{vT0}, 2, v1
        v_lshlrev_b32 v{vT0}, 7, v{vT0}
        v_and_b32 v{vT1}, 3, v1
        v_lshl_add_u32 v{vT0}, v{vT1}, 3, v{vT0}
        v_bfe_u32 v{vT1}, v1, 3, 2
        """)
        for mt in range(4):
            s.zeroO(2 * mt)
            a(f"v_xor_b32 v{vT3}, {mt}, v{vT1}")
            a(f"v_lshl_add_u32 v{vTl+mt}, v{vT3}, 5, v{vT0}")
        a(f"""
        v_and_b32 v{vT0}, 15, v1
        s_lshl_b32 s{t0}, s{sW}, 4
        v_add_u32 v{vT0}, s{t0}, v{vT0}
        v_lshlrev_b32 v{vT2}, 2, v{vT2}
        v_sub_u32 v{vT0}, v{vT0}, v{vT2}
        v_mov_b32 v{vT1}, 0x{f32hex(NEG)}
        """)
        for k in range(2):
            for kt in range(2):
                s.zeroO(2 * (2 * k + kt) + 1)
                for r in range(4):
                    sp = t0 + 2 * (r & 1)
                    a(f"v_cmp_gt_i32 s[{sp}:{sp+1}], {32*k+16*kt+r}, v{vT0}")
                    if r & 1:
                        a("s_nop 0")
                        a(f"v_cndmask_b32 v{MBK(k,kt)+r-1}, 0, v{vT1}, s[{t0}:{t0+1}]")
                        a(f"v_cndmask_b32 v{MBK(k,kt)+r}, 0, v{vT1}, s[{t2}:{t2+1}]")
        a(f"s_cmp_eq_u32 s{sB}, 0\ns_cselect_b32 s{t0}, 1.0, 0")
        for r in range(8): a(f"v_mul_f32 v{CM(0)+r}, s{t0}, v{MBK(0,0)+r}")
    def standalone(s):
        a, N = s.a, s.N
        a(f"""
        s_load_dwordx16 s[40:55], s[0:1], 0
        s_load_dwordx8 s[56:63], s[0:1], 64
        s_load_dwordx2 s[64:65], s[0:1], 96
        v_lshrrev_b32 v1, 6, v0
        s_and_b32 s{sH}, s2, 15
        v_readfirstlane_b32 s{sW}, v1
        v_and_b32 v1, 63, v0
        s_lshr_b32 s{sB}, s2, 4
        s_lshl_b32 s{sW4K}, s{sW}, 12
        v_lshlrev_b32 v{vL16}, 4, v1
        v_add_u32 v{vDma}, s{sW4K}, v{vL16}
        s_waitcnt lgkmcnt(0)
        s_mov_b32 s{SWS}, s{pWS}
        s_mov_b32 s{SWS+1}, s{pWS+1}
        s_mov_b32 s{SWS+2}, {WS_BYTES}
        s_mov_b32 s{SWS+3}, 0x20000
        s_mov_b32 s{sFl}, {NULLO}
        """)
        a.ext(s.stream_setup())
        a.ext(m0set(1)); a.ext(dma(1, vDma, True)); a.ext(adv_wr())
        a(f"s_lshl_b32 s{t0}, s{sH}, 4\ns_add_u32 s{t0}, s{t0}, s{sB}\ns_lshl_b32 s{t0}, s{t0}, 2\ns_add_u32 s{t0}, s{t0}, s{sW}\ns_lshl_b32 s{t0}, s{t0}, 14\ns_add_u32 s{t0}, s{t0}, {Q_OFF}")
        for k in range(16):
            if k and k % 4 == 0: a(f"s_add_u32 s{t0}, s{t0}, 4096")
            a(f"buffer_load_dwordx4 {ar(4 * k, 4)}, v{vL16}, {sr(SWS,4)}, s{t0} offen offset:{(k & 3) * 1024}")
        for k in range(2):
            for h in range(2):
                a.ext(m0set(h)); a("s_nop 0"); a.ext(dma(h, vDma, True))
            a.ext(adv_wr())
        a.ext(m0set(0)); a("s_nop 0"); a.ext(dma(0, vDma, True))
        a.ext(s.scal_setup())
        s.vec_setup()
        a("s_waitcnt vmcnt(20)\ns_barrier")
        for f in A_ENTRY: a(rdK(f)[0])
    def wswitch(s):
        a = s.a
        a(f"""
        s_mul_i32 s{t0}, s{sH}, {256*896}
        s_add_u32 s{SG}, s{pWO}, s{t0}
        s_addc_u32 s{SG+1}, s{pWO+1}, 0
        s_mov_b32 s{SG+2}, {256*896}
        s_mov_b32 s{sSrc}, 0
        s_mov_b32 s{sStep}, 128
        s_mov_b32 s{sHalf}, {128*896}
        s_mov_b32 s{sSrcEnd}, -1
        """)
        for j in range(4): a(f"v_mov_b32 v{vG+j}, v{vWo+j}")
    def spin(s, tag, issue, test, lab=None):
        a, N = s.a, s.N
        a(f"s_mov_b32 s{sSpin}, {SPINMAX}")
        a.label(f"{N}_sp{tag}")
        a(f"s_sub_u32 s{sSpin}, s{sSpin}, 1\ns_cbranch_scc1 {N}_spx{tag}")
        a(issue); a("s_waitcnt vmcnt(0)"); a(test)
        a(f"s_cbranch_scc0 {N}_sp{tag}")
        a.label(f"{N}_spx{tag}")
    def body(s):
        a, N, sch, opt = s.a, s.N, s.sch, s.opt
        phaseA, phaseB, plain, stamp = s.phaseA, s.phaseB, s.plain, s.stamp
        masked_c = lambda mq: (lambda kt, qs: vr(CM(kt), 4) if qs == mq else vr(NEGM(qs), 4))
        stamp(0)
        a.label(f"{N}_pro")
        sch.reset(A_ENTRY)
        dg = [19, 21, 23, 25]
        sch.phase(qk(0, [0, 1], lambda kt, qs: vr(CM(kt), 4) if qs == 0 else "0"),
                  {2 * k: [rdK(10 + k)] for k in range(6)}, [(20, UPD, 1)],
                  scal=[(0, t) for t in adv_rd()] + [(dg[3], t) for t in adv_wr()],
                  fixed={dg[0] - 1: m0set(1)}, fixedv={g: [d] for g, d in zip(dg, dma(1))})
        a("s_waitcnt vmcnt(16)\ns_barrier")
        a.ext(m0set(0))
        for f in A_ENTRY: a(rdK(f)[0])
        a.ext(dma(0))
        s.rowmax(0)
        for qs in range(2):
            for kt in range(2):
                for r in range(4): a(f"v_sub_f32 v{S(0,kt,qs)+r}, v{S(0,kt,qs)+r}, v{vT0+qs}")
        s.expw_plain(0, 0)
        for qs in range(2):
            for r in range(4): a(f"v_sub_f32 v{NEGM(qs)+r}, 0, v{vT0+qs}")
            a(f"v_mov_b32 v{vL+qs}, 0")
        a(f"""
        s_lshr_b32 s{sCnt}, s{sN}, 1
        s_lshl_b32 s{t0}, s{sSeg}, 1
        s_add_u32 s{sCnt}, s{sCnt}, s{t0}
        s_sub_u32 s{sCnt}, s{sCnt}, 3
        s_cbranch_scc0 {N}_loop
        """)
        plain(cm_ops(0, 1))
        a(f"s_mov_b32 s{t1}, {NULLO}\ns_branch {N}_T1")
        a.label(f"{N}_proe")
        a(".p2align 6")
        a.label(f"{N}_loop")
        phaseA(0, "le", post=[f"s_cmp_eq_u32 s{sSrc}, s{sSrcEnd}", f"s_cbranch_scc1 {N}_sw0"])
        a.label(f"{N}_sw0r")
        phaseB(0, post=[f"s_sub_u32 s{sCnt}, s{sCnt}, 1"])
        a(f"s_cbranch_scc1 {N}_exit")
        a.label(f"{N}_lo")
        phaseA(1, "lo")
        phaseB(1, flag=True)
        a(f"s_branch {N}_loop")
        a.label(f"{N}_sw0")
        s.wswitch()
        a(f"s_branch {N}_sw0r")
        a.label(f"{N}_sw1")
        s.wswitch()
        a(f"s_branch {N}_sw1r")
        HPOLL = f"buffer_load_dwordx2 {vr(vHp,2)}, off, {sr(SWS,4)}, s{sHf} sc1 ;D Lhp"
        def wentry():
            for f in range(10):
                for t, _ in rdW(f): a(t)
        a.label(f"{N}_L1")
        stamp(3)
        for f in B_ENTRY: a(rdV(f)[0])
        a(HPOLL)
        a.ext(m0set(1))
        s.expw_plain(1, 1)
        a.ext(dma(1)); a.ext(adv_wr())
        plain(check_ops())
        a(f"s_mov_b32 s{sRet}, {len(s.sites[1])}")
        s.branch_check(1, "L1")
        phaseB(1, expq=None, nxt=None)
        wentry()
        a(f"v_mov_b32 v{vL+2}, v{NEGM(0)}\nv_mov_b32 v{vL+3}, v{NEGM(1)}")
        a(f"s_add_u32 s{t0}, s{sPart}, 16384")
        a(f"buffer_store_dwordx4 {vr(vL,4)}, v{vL16}, {sr(SWS,4)}, s{t0} offen sc1 ;D Tp")
        for k in range(16):
            b = 128 + 8 * k
            if k % 4 == 0: a(f"s_add_u32 s{t0}, s{sPart}, {k*1024}")
            s.cvt_block(b)
            a(f"buffer_store_dwordx4 {vr(b,4)}, v{vL16}, {sr(SWS,4)}, s{t0} offen offset:{(k%4)*1024} sc1 ;D Tp")
            if k:
                for r in range(4): a(f"v_accvgpr_read_b32 v{b-8+r}, a{192+4*(k-1)+r}")
        a(f"v_mov_b32 v{vL}, v{vRs}\nv_mov_b32 v{vL+1}, v{vRs+1}\ns_mov_b32 s{sFlIt}, 5")
        for r in range(4): a(f"v_accvgpr_read_b32 v{248+r}, a{252+r}")
        a(f"s_waitcnt vmcnt(21)\ns_branch {N}_oent")
        a.label(f"{N}_exit")
        a(f"s_cmp_lg_u32 s{sSeg}, 0\ns_cbranch_scc1 {N}_L1")
        a.label(f"{N}_T0")
        stamp(1)
        plain(cm_ops(0, 0))
        POLL = f"buffer_load_dword v{vPm}, off, {sr(SWS,4)}, s{sPoll} sc1 ;D Lpo"
        PTEST = f"v_readfirstlane_b32 s{t1}, v{vPm} ;U Lpo\ns_min_u32 s{sSeen}, s{t1}, s{sComb}\ns_cmp_lg_u32 s{sSeen}, 0"
        def part_loads(b):
            a(f"s_add_u32 s{t0}, s{b}, 16384")
            a(f"buffer_load_dwordx4 {vr(vPm,4)}, v{vL16}, {sr(SWS,4)}, s{t0} offen sc1 ;D Lp")
            for k in range(16):
                if k % 4 == 0: a(f"s_add_u32 s{t0}, s{b}, {k*1024}")
                a(f"buffer_load_dwordx4 {ar(128+4*k,4)}, v{vL16}, {sr(SWS,4)}, s{t0} offen offset:{(k%4)*1024} sc1 ;D Lp")
        a(POLL)
        phaseA(1, "T0", cinit=masked_c(0))
        phaseB(1, extra=cm_ops(0, 1), flag=True)
        a(f"s_waitcnt vmcnt(9)\n{PTEST}\ns_cselect_b32 s{t1}, s{sLd}, {NULLO}")
        a.label(f"{N}_T1")
        part_loads(t1)
        phaseA(0, "T1", cinit=masked_c(0))
        a(f"""
        s_cmp_ge_u32 s{sB}, 8
        s_cselect_b32 s{t0}, 0, s{sY}
        s_cmp_eq_u32 s{t0}, 0
        s_cbranch_scc1 {N}_sw1
        s_mov_b32 s{sSrc}, s{sKVh}
        s_add_u32 s{t0}, s{t0}, 1
        s_lshl_b32 s{t0}, s{t0}, 15
        s_add_u32 s{sSrcEnd}, s{sKVh}, s{t0}
        """)
        a.label(f"{N}_sw1r")
        phaseB(0, extra=cm_ops(1, 0), vm=33)
        phaseA(1, "T2", cinit=masked_c(1), half=True)
        phaseB(1, expq=1, extra=cm_ops(1, 1), vm=33, flag=True)
        phaseA(0, "T3", cinit=masked_c(1), half=True, expq=None)
        phaseB(0, half=True, accq=(1,), expq=1, nxt="V")
        a(HPOLL)
        a.ext(m0set(1))
        plain(check_ops())
        a.ext(dma(1)); a.ext(adv_wr())
        a(f"s_mov_b32 s{sRet}, {len(s.sites[1])}")
        s.branch_check(1, "T4")
        phaseB(1, half=True, accq=(1,), expq=None, nxt=None)
        stamp(2)
        a(f"s_cmp_eq_u32 s{sComb}, s{sSeen}\ns_cbranch_scc1 {N}_seen")
        a.label(f"{N}_unseen")
        s.spin("p", POLL, PTEST)
        part_loads(sLd)
        a("s_waitcnt vmcnt(0)")
        a.label(f"{N}_seen")
        a(f"s_cmp_lg_u32 s{sSrcEnd}, -1\ns_cbranch_scc1 {N}_stash")
        a.label(f"{N}_went")
        wentry()
        a(f"s_mov_b32 s{sFlIt}, -1\ns_cmp_eq_u32 s{sComb}, 0\ns_cbranch_scc1 {N}_nocomb")
        a.label(f"{N}_comb")
        a(f"""
        v_sub_f32 v{vT0}, v{NEGM(0)}, v{vPm+2} ;U Lp
        v_sub_f32 v{vT1}, v{NEGM(1)}, v{vPm+3}
        v_max_f32 v{vT2}, v{vT0}, v{vT1}
        v_cmp_lt_f32 vcc, 0x{f32hex(opt.get('cthr', 16.0))}, v{vT2}
        s_cbranch_vccnz {N}_crare
        """)
        a.label(f"{N}_cmb")
        a(f"v_exp_f32 v{vT0}, v{vT0}\nv_exp_f32 v{vT1}, v{vT1}\ns_nop 0")
        a(f"v_fmac_f32 v{vL}, v{vPm}, v{vT0}\nv_fmac_f32 v{vL+1}, v{vPm+1}, v{vT1}")
        for k in range(16):
            b = 128 + 8 * k
            for r in range(4): a(f"v_accvgpr_read_b32 v{vE+r}, a{128+4*k+r}")
            for r in range(4):
                a(f"v_lshlrev_b32 v{vE+4+r}, 16, v{vE+r}")
                a(f"v_and_b32 v{vE+r}, s{sMask}, v{vE+r}")
            for r in range(4):
                a(f"v_fmac_f32 v{b+2*r}, v{vE+4+r}, v{vT0+(k&1)}")
                a(f"v_fmac_f32 v{b+2*r+1}, v{vE+r}, v{vT0+(k&1)}")
        a.label(f"{N}_nocomb")
        s.xl(vL, "add")
        a(f"v_rcp_f32 v{vL}, v{vL}\nv_rcp_f32 v{vL+1}, v{vL+1}")
        for qs in range(2):
            for dk in range(8): s.cvt_block(OB(dk, qs))
        a("s_waitcnt vmcnt(4)")
        a.label(f"{N}_oent")
        stamp(4)
        a(f"""
        s_lshl_b32 s{t0}, s{sH}, 7
        s_lshl_b32 s{t1}, s{sB}, 3
        s_add_u32 s{t0}, s{t0}, s{t1}
        s_add_u32 s{t0}, s{t0}, s{sW}           ; h*128 + qsub
        s_mul_i32 s{sSt0}, s{t0}, {14*1024}
        s_add_u32 s{sSt0}, s{sSt0}, {SL_OFF}
        v_add_u32 v{vT1}, {4*14*1024}, v{vL16}
        s_mov_b32 s{sSeg}, 0
        s_cmp_ge_u32 s{sB}, 7
        s_cbranch_scc1 {N}_ogo
        """)
        a.label(f"{N}_hld")
        HTEST = f"v_min_u32 v{vHp}, v{vHp}, v{vHp+1} ;U Lhp\ns_nop 0\nv_readfirstlane_b32 s{t1}, v{vHp}\ns_cmp_lg_u32 s{t1}, 0"
        a(f"{HTEST}\ns_cbranch_scc1 {N}_spxh")
        s.spin("h", HPOLL, HTEST)
        for k in range(16):
            qs, dk = k >> 3, k & 7
            if k % 4 == 0: a(f"s_add_u32 s{t0}, s{sHo}, {qs * 4 * 56 * 1024 + dk * 1024}")
            a(f"buffer_load_dwordx4 {ar(4 * k, 4)}, v{vL16}, {sr(SWS,4)}, s{t0} offen offset:{(k & 3) * 1024} sc1 ;D Lh")
        a(f"s_mov_b32 s{sSeg}, 1")
        a.label(f"{N}_ogo")
        a(f"s_mov_b32 s{sSt1}, {NULLO}\ns_mov_b32 s{sCnt}, 6"); a.ext(m0set(1))
        if opt.get("onost"): a(f"s_mov_b32 s{sSt0}, {NULLO}")
        if opt.get("onold"): a(f"s_mov_b32 s{SG+2}, 0\ns_mov_b32 s{sNx+2}, 0")
        def otile(pr, kt, qs, g):
            x = S(pr, kt, qs); o = vOut + 4 * qs + 2 * kt
            v = [(g, f"v_mul_f32 v{x+r}, v{x+r}, v{vL+qs}", 1) for r in range(4)]
            v += [(g, f"v_cvt_pk_bf16_f32 v{o+r}, v{x+2*r}, v{x+2*r+1}", 1) for r in range(2)]
            if kt: v.append((g, f"buffer_store_dwordx4 {vr(o-2,4)}, v{vL16 if qs == 0 else vT1}, {sr(SWS,4)}, s{sSt1 if pr else sSt0} offen offset:{pr*1024} {opt.get('opol', 'sc1')} ;D Ts", 1))
            return v
        a(".p2align 6")
        a.label(f"{N}_oloop")
        sch.reset([100 + f for f in range(10) for _ in range(2)])
        mf = []
        for mt in range(4):
            for qs in range(2):
                for dk in range(8):
                    d = S(mt >> 1, mt & 1, qs)
                    mf.append((mm(d, F(mt * 8 + dk), vr(OB(dk, qs), 4), "0" if dk == 0 else vr(d, 4)), 100 + mt * 8 + dk))
        reads = {}
        for k in range(32):
            f = (10 + k) % 32
            rr = rdW(f)
            if k >= 22: rr = [(t, 300 + f) for t, _ in rr]
            reads[2 * k] = [rr[0]]; reads[2 * k + 1] = [rr[1]]
        d1, d0 = [1, 9, 16, 24], [46, 49, 53, 57]
        fv = {g: [d] for g, d in zip(d1 + d0, dma(1, vWo) + dma(0, vWo))}
        fv[17] = [UPDW[0]]; fv[25] = [UPDW[1]]; fv[33] = [UPDW[2]]; fv[0] = [UPDW[3]]; fv[45] = [FLAG]
        valu = otile(1, 1, 1, 2)
        for t in range(7): valu += otile(t >> 2, (t >> 1) & 1, t & 1, 8 * t + 9)
        sw = [f"s_cmp_eq_u32 s{sSrc}, 896"] + [f"s_cselect_b32 s{SG+k}, s{sNx+k}, s{SG+k}" for k in range(3)] + \
             [f"s_cselect_b32 s{sNx+2}, 0, s{sNx+2}", f"s_cselect_b32 s{sSrc}, 0, s{sSrc}",
              f"s_cmp_eq_u32 s{sCnt}, s{sFlIt}", f"s_cselect_b32 s{sFl}, s{sFlN}, {NULLO}"]
        sch.phase(mf, reads, valu,
                  scal=[(8, t) for t in adv_rd()] + [(12, f"s_mov_b32 s{sSt1}, s{sSt0}")] + [(24, t) for t in adv_wr() + sw] +
                       [(56, f"s_add_u32 s{sSt0}, s{sSt0}, 2048")] + [(58, t) for t in m0set(1)] + [(60, f"s_sub_u32 s{sCnt}, s{sCnt}, 1")],
                  fixed={43: [f"s_waitcnt vmcnt({opt.get('ovm', 28)})"], 44: ["s_barrier"], 45: m0set(0)}, fixedv=fv)
        if opt.get("verbose"): print("oloop over", sch.over)
        a(f"s_cbranch_scc0 {N}_oloop")
        a.label(f"{N}_oend")
        a("s_nop 4")
        plain(otile(1, 1, 1, 0))
        a(f"""
        s_cmp_eq_u32 s{sSeg}, 2
        s_cbranch_scc1 {N}_fin
        s_lshl_b32 s{t0}, s{sB}, 5
        s_add_u32 s{t0}, s{t0}, s{sH}
        s_lshl_b32 s{t0}, s{t0}, 2
        s_add_u32 s{sFlN}, s{t0}, {FLAG_OFF}
        s_mov_b32 s{sLd}, s{sFlN}
        s_cmp_eq_u32 s{sSeg}, 0
        s_cbranch_scc1 {N}_fin
        """)
        a.label(f"{N}_ffn")
        stamp(5)
        for k in range(16):
            for r in range(4): a(f"v_accvgpr_read_b32 v{OB(k & 7, k >> 3)+r}, a{4*k+r}" + (" ;U Lh" if k + r == 0 else ""))
        a(f"""
        v_mov_b32 v{vL}, 0x{f32hex(1.0/QSCALE**2)}
        v_mov_b32 v{vL+1}, v{vL}
        s_add_u32 s{t0}, s{sB}, 16
        s_lshl_b32 s{t1}, s{sH}, 5
        s_add_u32 s{t1}, s{t1}, s{t0}
        s_lshl_b32 s{t1}, s{t1}, 2
        s_add_u32 s{sLd}, s{t1}, {FLAG_OFF}
        s_lshl_b32 s{t0}, s{t0}, 7
        s_lshl_b32 s{t1}, s{sH}, 3
        s_add_u32 s{t0}, s{t0}, s{t1}
        s_add_u32 s{t0}, s{t0}, s{sW}
        s_mul_i32 s{sSt0}, s{t0}, {14*1024}
        s_add_u32 s{sSt0}, s{sSt0}, {SL_OFF}
        s_mov_b32 s{sSeg}, 2
        s_mov_b32 s{sFlIt}, 4
        s_branch {N}_ogo
        """)
        a.label(f"{N}_stash")
        for f in A_ENTRY: a(rdK(f)[0])
        s.xl(vL, "add")
        a(f"v_rcp_f32 v{vRs}, v{vL}\nv_rcp_f32 v{vRs+1}, v{vL+1}")
        for r in range(4): a(f"v_mov_b32 v{P(1,1)+r}, 0")
        for k in range(16):
            b = 128 + 8 * k
            s.cvt_block(b)
            for r in range(4): a(f"v_accvgpr_write_b32 a{192+4*k+r}, v{b+r}")
            if k & 1: s.zeroO(k >> 1)
        for r in range(64): a(f"v_accvgpr_mov_b32 a{r}, a{128+r}" + (" ;U Lp" if r == 0 else ""))
        for r in range(8): a(f"v_mov_b32 v{CM(0)+r}, 0")
        a(f"s_mov_b32 s{sSeg}, 1\ns_mov_b32 s{sN}, s{sY}\ns_branch {N}_pro")
        a.label(f"{N}_stashe")
        a.label(f"{N}_crare")
        a(f"""
        v_max_f32 v{vT2}, 0, v{vT0}
        v_max_f32 v{vT3}, 0, v{vT1}
        v_sub_f32 v{vT0}, v{vT0}, v{vT2}
        v_sub_f32 v{vT1}, v{vT1}, v{vT3}
        v_exp_f32 v{vT2}, -v{vT2}
        v_exp_f32 v{vT3}, -v{vT3}
        s_nop 0
        """)
        for qs in range(2):
            a(f"v_mul_f32 v{vL+qs}, v{vL+qs}, v{vT2+qs}")
            for dk in range(8):
                for r in range(8): a(f"v_mul_f32 v{OB(dk,qs)+r}, v{OB(dk,qs)+r}, v{vT2+qs}")
        a(f"s_branch {N}_cmb")
        for p in range(2):
            a.label(f"{N}_rare{p}")
            a("s_nop 7")
            s.rowmax(p)
            a(f"v_max_f32 v{vT0}, 0, v{vT0}\nv_max_f32 v{vT1}, 0, v{vT1}")
            a(f"v_exp_f32 v{vT2}, -v{vT0}\nv_exp_f32 v{vT3}, -v{vT1}")
            for qs in range(2):
                for pp in range(2):
                    for kt in range(2):
                        for r in range(4): a(f"v_sub_f32 v{S(pp,kt,qs)+r}, v{S(pp,kt,qs)+r}, v{vT0+qs}")
                for r in range(4): a(f"v_sub_f32 v{NEGM(qs)+r}, v{NEGM(qs)+r}, v{vT0+qs}")
                a(f"v_mul_f32 v{vL+qs}, v{vL+qs}, v{vT2+qs}")
                for dk in range(8):
                    for r in range(8): a(f"v_mul_f32 v{OB(dk,qs)+r}, v{OB(dk,qs)+r}, v{vT2+qs}")
                s.expw_plain(p, qs)
            for k, tag in enumerate(s.sites[p][:-1]):
                a(f"s_cmp_eq_u32 s{sRet}, {k}\ns_cbranch_scc1 {N}_ret_{tag}")
            a(f"s_branch {N}_ret_{s.sites[p][-1]}")
        s.final()
    def final(s):
        a, N = s.a, s.N
        vU, vXo, vFp, vFo, vX, vSel, SA, YA, vE2 = 10, 12, 14, 15, 32, 72, 88, 104, 40
        sSl, sFo = sSt0, sSt1
        a.label(f"{N}_fin")
        s.stamp(6)
        FP = f"buffer_load_dword v{vFp}, v{vFo}, {sr(SWS,4)}, s{sFo} offen sc1"
        a(f"""
        v_lshrrev_b32 v{vFo}, 2, v{vL16}
        s_lshl_b32 s{sFo}, s{sB}, 7
        v_and_b32 v{vFo}, 127, v{vFo}
        s_add_u32 s{sFo}, s{sFo}, {FLAG_OFF}
        {FP}
        s_lshl_b32 s{t0}, s{sB}, 3
        s_lshr_b32 s{t1}, s{sH}, 1
        s_add_u32 s{t0}, s{t0}, s{t1}          ; qsub
        s_and_b32 s{t1}, s{sH}, 1
        s_mul_i32 s{t1}, s{t1}, 7
        s_lshl_b32 s{t2}, s{sW}, 1
        s_add_u32 s{t1}, s{t1}, s{t2}          ; mp
        s_mul_i32 s{sSl}, s{t0}, 14
        s_add_u32 s{sSl}, s{sSl}, s{t1}
        s_lshl_b32 s{sSl}, s{sSl}, 10
        s_add_u32 s{sSl}, s{sSl}, {SL_OFF}
        s_mul_i32 s{t0}, s{t0}, {16*896}
        s_lshl_b32 s{t1}, s{t1}, 6
        s_add_u32 s{t0}, s{t0}, s{t1}
        s_cmp_eq_u32 s{sW}, 3
        s_cselect_b32 s{t2}, 0x7f000000, 0
        v_bfe_u32 v{vT0}, v{vL16}, 4, 4        ; j
        v_lshrrev_b32 v{vT2}, 8, v{vL16}       ; g
        v_mul_u32_u24 v{vXo}, 896, v{vT0}
        v_lshl_add_u32 v{vXo}, v{vT2}, 3, v{vXo}
        v_add_u32 v{vXo}, s{t0}, v{vXo}
        v_add_u32 v{vXo+1}, s{t2}, v{vXo}
        v_add_u32 v{vU}, s{t2}, v{vL16}
        s_mov_b32 s{SX2}, s{pX}
        s_mov_b32 s{SX2+1}, s{pX+1}
        s_mov_b32 s{SX2+2}, {XN_BYTES}
        s_mov_b32 s{SX2+3}, 0x20000
        """)
        for k in range(4): a(f"buffer_load_dwordx2 {vr(vX+2*k,2)}, v{vXo+(k>>1)}, {sr(SX2,4)}, 0 offen offset:{32*k}")
        a(f"""
        s_mov_b32 s{SO}, s{pOUT}
        s_mov_b32 s{SO+1}, s{pOUT+1}
        s_mov_b32 s{SO+2}, {XN_BYTES}
        s_mov_b32 s{SO+3}, 0x20000
        s_mov_b32 s{sFl}, s{sLd}
        v_lshrrev_b32 v{vT1}, 2, v{vT0}
        v_cmp_eq_u32 vcc, v{vT1}, v{vT2}
        v_and_b32 v{vT1}, 1, v{vT0}
        v_lshlrev_b32 v{vT1}, 4, v{vT1}
        v_mov_b32 v{vT3}, 0x3f80
        v_lshlrev_b32 v{vT3}, v{vT1}, v{vT3}
        v_cndmask_b32 v{vT3}, 0, v{vT3}, vcc
        v_and_b32 v{vT1}, 2, v{vT0}
        v_cmp_eq_u32 vcc, 0, v{vT1}
        v_mov_b32 v{vSel}, 0
        v_mov_b32 v{vSel+1}, 0
        v_mov_b32 v{vSel+4}, 0
        v_mov_b32 v{vSel+5}, 0
        v_cndmask_b32 v{vSel+2}, 0, v{vT3}, vcc
        v_cndmask_b32 v{vSel+3}, v{vT3}, 0, vcc
        s_mov_b32 s{sSpin}, {SPINMAX}
        s_waitcnt vmcnt(4)
        s_barrier
        {FLAG}
        """)
        a.label(f"{N}_fine")
        def ld(dst, hh, u): return f"buffer_load_dwordx4 {dst}, v{vU if u else vL16}, {sr(SWS,4)}, s{t0} offen offset:{u*1024} sc1"
        def SF(h, u): return vr(128 + (2 * h + u) * 4, 4)
        def YF(f, u): return ar((2 * f + u) * 4, 4)
        def loads(R, h0, n):
            for h in range(n):
                a(f"s_add_u32 s{t0}, s{sSl}, {(h0 + h) * SLS}")
                for u in range(2): a(ld(R(h, u), h, u))
        def summ(R, n, A, after):
            for h in range(n):
                a(f"s_waitcnt vmcnt({after + 2 * (n - 1 - h)})")
                for u in range(2):
                    for hf in range(2):
                        d = A + 8 * u + 4 * hf
                        a(mm(d, vr(vSel + 2 - 2 * hf, 4), R(h, u), "0" if h == 0 else vr(d, 4)))
        def gate():
            a(f"s_mov_b32 s{t1}, 0x{f32hex(-LOG2E)}\ns_nop 6")
            for r in range(16): a(f"v_mul_f32 v{vE2+r}, s{t1}, v{YA+r}")
            for r in range(16): a(f"v_exp_f32 v{vE2+r}, v{vE2+r}")
            for r in range(16): a(f"v_add_f32 v{vE2+r}, 1.0, v{vE2+r}")
            for r in range(16): a(f"v_rcp_f32 v{vE2+r}, v{vE2+r}")
            for r in range(16): a(f"v_mul_f32 v{YA+r}, v{YA+r}, v{vE2+r}")
            for r in range(8): a(f"v_lshlrev_b32 v{vE2+2*r}, 16, v{vX+r}\nv_and_b32 v{vE2+2*r+1}, s{sMask}, v{vX+r}")
        TEST = f"v_cmp_eq_u32 vcc, 0, v{vFp}"
        def repoll(back, giveup):
            a(f"s_sub_u32 s{sSpin}, s{sSpin}, 1\ns_cbranch_scc1 {giveup}\n{FP}\ns_waitcnt vmcnt(0)\ns_branch {back}")
        a.label(f"{N}_fa")
        a(f"{TEST}\ns_and_b32 s{t1}, vcc_lo, 0x7f0000\ns_cbranch_scc0 {N}_fy\ns_and_b32 s{t1}, vcc_lo, 0xffff\ns_cbranch_scc0 {N}_fs")
        repoll(f"{N}_fa", f"{N}_fy")
        a.label(f"{N}_fs")
        loads(SF, 0, 16)
        a.label(f"{N}_fs1")
        repoll(f"{N}_fs2", f"{N}_fs3")
        a.label(f"{N}_fs2")
        a(f"{TEST}\ns_and_b32 s{t1}, vcc_lo, 0x7f0000\ns_cbranch_scc1 {N}_fs1")
        a.label(f"{N}_fs3")
        loads(YF, 16, 7)
        summ(SF, 16, SA, 14); summ(YF, 7, YA, 0); gate()
        a(f"s_branch {N}_fout")
        a.label(f"{N}_fy")
        loads(YF, 16, 7)
        a(f"s_branch {N}_fy2")
        a.label(f"{N}_fy1")
        repoll(f"{N}_fy2", f"{N}_fy3")
        a.label(f"{N}_fy2")
        a(f"{TEST}\ns_and_b32 s{t1}, vcc_lo, 0xffff\ns_cbranch_scc1 {N}_fy1")
        a.label(f"{N}_fy3")
        s.stamp(7)
        loads(SF, 0, 16)
        summ(YF, 7, YA, 32); gate(); summ(SF, 16, SA, 0)
        a("s_nop 4")
        a.label(f"{N}_fout")
        for r in range(16): a(f"v_fmac_f32 v{vE2+r}, v{SA+r}, v{YA+r}")
        for r in range(8): a(f"v_cvt_pk_bf16_f32 v{vX+r}, v{vE2+2*r}, v{vE2+2*r+1}")
        for k in range(4): a(f"buffer_store_dwordx2 {vr(vX+2*k,2)}, v{vXo+(k>>1)}, {sr(SO,4)}, 0 offen offset:{32*k}")
    def stamps_out(s):
        a = s.a
        a(f"""
        s_waitcnt vmcnt(0)
        s_memtime s[4:5]
        s_memrealtime s[6:7]
        s_waitcnt lgkmcnt(0)
        s_sub_u32 s{t0}, s4, s{sTm}
        s_sub_u32 s{t1}, s6, s{sTm+10}
        v_mov_b32 v24, s{t0}
        v_mov_b32 v25, s{t1}
        v_mov_b32 v26, s{sTm+10}
        v_mov_b32 v27, s6
        s_lshl_b32 s{t2}, s2, 6
        s_lshl_b32 s{t3}, s{sW}, 4
        s_add_u32 s{t2}, s{t2}, s{t3}
        s_add_u32 s{t2}, s{t2}, {STAMP_OFF + MB}
        v_mov_b32 v28, 0
        s_mov_b64 exec, 1
        buffer_store_dwordx4 v[24:27], v28, {sr(SWS,4)}, s{t2} offen
        """)
        for blk in range(2):
            for k in range(4): a(f"s_sub_u32 s{t0}, s{STP[4*blk+k]}, s{sTm}\nv_mov_b32 v{4+4*blk+k}, s{t0}")
            a(f"s_add_u32 s{t2}, s{t2}, 65536")
            a(f"buffer_store_dwordx4 v[{4+4*blk}:{7+4*blk}], v28, {sr(SWS,4)}, s{t2} offen")
        a(f"v_mov_b32 v12, s{sSeen}\ns_add_u32 s{t2}, s{t2}, 65536\nbuffer_store_dword v12, v28, {sr(SWS,4)}, s{t2} offen")
    def paths(s, f1=None):
        N = s.N
        L = lambda x, y, *z: (f"{N}_{x}", f"{N}_{y}") + z
        def steps(ne, f=f1):
            r = []
            for k in range(ne):
                r.append(L("loop", "lo"))
                if k < ne - 1: r.append(L("lo", "sw0", f) if f and k == 0 else L("lo", "sw0"))
            return r
        def ol(fl=None, it=0): return [L("ogo", "oloop")] + [L("oloop", "oend", fl) if fl and k == it else L("oloop", "oend") for k in range(7)] + [L("oend", "ffn")]
        fin = [L("fin", "fine", "Ts")]
        pro = [L("pro", "proe")]
        ffn = [("@ren", "Ts", "Tz"), L("ffn", "stash")] + ol("Tz", 2)
        helper = lambda ne: [L("seen", "went"), L("stash", "stashe")] + pro + steps(ne, None) + [L("L1", "exit"), L("oent", "sph"), L("spxh", "ogo")] + ol("Tp", 1) + ffn + fin
        A = pro + steps(4) + [L("T0", "unseen"), L("seen", "hld")] + ol() + fin
        B0 = pro + [L("T1", "seen", f1) if f1 else L("T1", "seen")] + helper(3)
        B1 = pro + steps(2) + [L("T0", "unseen")] + helper(2)
        B6 = pro + steps(3) + [L("T0", "unseen"), L("seen", "comb"), L("nocomb", "sph"), L("spxh", "ogo")] + ol() + ffn + fin
        return [A, B0, B1, B6]

def gen_k2(name="attn_kernel", opt=None):
    opt = opt or {}
    a = Asm(); N = name
    P = P2(a, N, opt)
    a(f".p2align 8\n.globl {N}\n.type {N},@function")
    a.label(N)
    a(f"s_cmp_ge_u32 s2, 256\ns_cbranch_scc1 {N}_done")
    if opt.get("stamp"): a(f"s_memtime s[{sTm}:{sTm+1}]\ns_memrealtime s[{sTm+10}:{sTm+11}]")
    P.standalone()
    P.body()
    if opt.get("stamp"): P.stamps_out()
    a.label(f"{N}_done")
    a("s_endpgm")
    import trace
    for p in P.paths(): print("trace2 bad:", trace.check(a.text(), [(N, f"{N}_pro")] + p))
    return a.text(), kernel_desc(N, 512, 102, 256), f"; @launch kernel={N} grid=(256,1,1) block=(256,1,1) lds=163840"
```

```python
from mb8 import *
T = {}
dma = lambda i: f"buffer_load_dwordx4 v3, s[8:11], 0 offen offset:{(i%4)*1024} lds"
st = lambda i: f"buffer_store_dwordx4 v[4:7], v3, s[20:23], s33 offen offset:{(i%4)*1024} sc1"
pre2 = pre + ["s_lshl_b32 s33, s2, 14", "s_lshl_b32 s35, s34, 12", "s_add_u32 s33, s33, s35", "s_mov_b32 m0, s35", "s_waitcnt vmcnt(24)"]
def pat(special, per=8, alt=True):
    def f(i):
        if i % per == 0: return special(i)
        if alt: return [W, tr(i), tr(i+1)] if i % 2 else [sal(i), mul(i), mul(i+1)]
        return [W, tr(i), mul(i)]
    return pre2 + with_fill(b16, f)
T["a_dma_mul"] = pat(lambda i: [sal(i), dma(i//8), mul(i)])
T["b_mul_dma"] = pat(lambda i: [sal(i), mul(i), dma(i//8)])
T["c_tr_dma"] = pat(lambda i: [W, tr(i), dma(i//8)], alt=False)
T["d_dma_tr"] = pat(lambda i: [W, dma(i//8), tr(i)], alt=False)
T["e_st_mul"] = pat(lambda i: [sal(i), st(i//16), mul(i)], 16)
T["f_mul_st"] = pat(lambda i: [sal(i), mul(i), st(i//16)], 16)
T["g_tr_st"] = pat(lambda i: [W, tr(i), st(i//16)], 16, alt=False)
T["h_st_tr"] = pat(lambda i: [W, st(i//16), tr(i)], 16, alt=False)
T["i_dma_only"] = pat(lambda i: [sal(i), dma(i//8)])
T["j_st_only"] = pat(lambda i: [sal(i), st(i//16)], 16)
T["k_dma4"] = pat(lambda i: [sal(i), dma(i//4), mul(i)], 4)
T["l_mix"] = pat(lambda i: [sal(i), dma(i//4) if i % 12 else st(i//12), mul(i)], 4)
for k, b in T.items():
    open(f"mj_{k}.s", "w").write(build([gen("mb_kernel", b, 40)]))
print(" ".join(f"mj_{k}.s" for k in T))
print(json.dumps([f"dev/mj_{k}.s" for k in T]))
```
